```python
import torch

def _softmax(x, axis=-1):
    return torch.softmax(x, dim=axis)
def _gelu(x):
    return torch.nn.functional.gelu(x, approximate="tanh")
def _silu(x):
    return torch.nn.functional.silu(x)
def _sigmoid(x):
    return torch.sigmoid(x)
def _layernorm(x, axis=-1, eps=1e-5):
    m = x.mean(dim=axis, keepdim=True)
    v = x.var(dim=axis, keepdim=True, unbiased=False)
    return (x - m) / torch.sqrt(v + eps)
def _scatter_add(tgt, idx, src, axis=0):
    return tgt.clone().index_add_(axis, idx, src)
def _segment_sum(src, seg, n):
    out = torch.zeros((n,) + src.shape[1:], dtype=src.dtype)
    return out.index_add_(0, seg, src)
def _pad(x, pw):
    flat = tuple(v for pair in reversed(pw) for v in pair)
    return torch.nn.functional.pad(x, flat)

kernel_name = 'gather_scatter__edge_featured_mpnn_mpnn__graph'

def setup_inputs():

    _w = (lambda a: (lambda t: t.to(torch.bfloat16) if t.is_floating_point() else t)(torch.as_tensor(a)))
    N, deg, D, De = 10000, 64, 64, max(4, 1)
    E = N * deg
    H = 2 * D
    return {
        "x": _w((lambda *s: torch.randn(*s, dtype=torch.bfloat16) * 0.05)(N, D)),
        "e_attr": _w((lambda *s: torch.randn(*s, dtype=torch.bfloat16) * 1.6)(E, De)),
        "src": _w((lambda lo, hi, *s: torch.randint(lo, hi, s))(0, N, E).to(torch.int64)),
        "dst": _w((lambda lo, hi, *s: torch.randint(lo, hi, s))(0, N, E).to(torch.int64)),
        "w1": _w((lambda *s: torch.randn(*s, dtype=torch.bfloat16) * 1.6)(2 * D + De, H) * (1.0 / (2 * D + De) ** 0.5)),
        "b1": _w((lambda *s: torch.randn(*s, dtype=torch.bfloat16) * 3.2)(H) * 0.01),
        "w2": _w((lambda *s: torch.randn(*s, dtype=torch.bfloat16) * 0.05)(H, D) * (1.0 / H ** 0.5)),
        "b2": _w((lambda *s: torch.randn(*s, dtype=torch.bfloat16) * 0.05)(D) * 0.01),
    }

def reference(x, e_attr, src, dst, w1, b1, w2, b2):
    N, D = x.shape
    h_src = x[src]
    h_dst = x[dst]
    m_in = torch.concatenate([h_src, h_dst, e_attr], axis=-1)
    h = _silu(m_in @ w1 + b1)
    msg = h @ w2 + b2
    return _segment_sum(msg, dst, N)
```

```python
import sys

NAME = "gather_scatter__edge_featured_mpnn_mpnn__graph"
N, E = 10000, 640000
NB, NPB = 250, 40
NC, EPC = 250, 2560
WS_DESC = 0x800000
WS_PACK = 0x900000
PK_W1S, PK_W1D, PK_W2, PK_B5 = 0, 16384, 32768, 49152
PK_SIZE = 51200
NLOG2E = 0xBFB8AA3B
NLN2 = 0xBF317218
ONE2 = 0x3F803F80

o = []
def e(s=""):
    o.append("    " + s if s and not s.endswith(":") else s)
def c(s):
    o.append("    ; " + s)
def vr(a, n):
    return f"v[{a}:{a+n-1}]"
def srd(d, lo, hi, nrec, w1or=None, add=None):
    if add is None:
        e(f"s_mov_b32 s{d}, s{lo}")
        e(f"s_and_b32 s{d+1}, s{hi}, 0xffff")
    else:
        e(f"s_add_u32 s{d}, s{lo}, {add}")
        e(f"s_addc_u32 s{d+1}, s{hi}, 0")
        e(f"s_and_b32 s{d+1}, s{d+1}, 0xffff")
    if w1or is not None:
        e(f"s_or_b32 s{d+1}, s{d+1}, {w1or:#x}")
    e(f"s_mov_b32 s{d+2}, {nrec}")
    e(f"s_mov_b32 s{d+3}, 0x20000")
def scan(v, op="v_add_u32_dpp"):
    for sh in (1, 2, 4, 8):
        e("s_nop 1")
        e(f"{op} v{v}, v{v}, v{v} row_shr:{sh} row_mask:0xf bank_mask:0xf bound_ctrl:0")
    e("s_nop 1")
    e(f"{op} v{v}, v{v}, v{v} row_bcast:15 row_mask:0xa bank_mask:0xf")
    e("s_nop 1")
    e(f"{op} v{v}, v{v}, v{v} row_bcast:31 row_mask:0xc bank_mask:0xf")

K1_CNT, K1_BASE, K1_STG = 0, 1024, 2048
K1_LDS = K1_STG + EPC * 12
K1_T = 640

def kernel1():
    e("mpnn_sort_kernel:")
    e("s_cmp_ge_u32 s2, 256")
    e("s_cbranch_scc1 K1_done")
    e("s_load_dwordx4 s[4:7], s[0:1], 8")
    e("s_load_dwordx4 s[8:11], s[0:1], 24")
    e("s_load_dwordx2 s[12:13], s[0:1], 48")
    e("s_load_dwordx2 s[14:15], s[0:1], 80")
    e("s_cmp_ge_u32 s2, 250")
    e("s_cbranch_scc1 K1_pack")
    c("zero the bucket counters")
    e("v_lshlrev_b32 v1, 2, v0")
    e("v_mov_b32 v2, 0")
    e("v_cmp_gt_u32 vcc, 256, v0")
    e("s_and_saveexec_b64 s[40:41], vcc")
    e(f"ds_write_b32 v1, v2 offset:{K1_CNT}")
    e("s_mov_b64 exec, s[40:41]")
    e("v_lshlrev_b32 v3, 3, v0")
    e("v_lshlrev_b32 v4, 4, v0")
    e(f"s_mul_i32 s3, s2, {EPC*4}")
    e("s_lshl_b32 s36, s3, 1")
    e(f"s_add_u32 s37, s3, {EPC*2}")
    e(f"s_add_u32 s38, s36, {EPC*4}")
    e("v_readfirstlane_b32 s39, v0")
    e("s_waitcnt lgkmcnt(0)")
    srd(16, 8, 9, E * 4)
    srd(20, 6, 7, E * 4)
    srd(24, 4, 5, E * 8)
    e("buffer_load_dwordx2 v[8:9], v3, s[16:19], s3 offen")
    e("buffer_load_dwordx2 v[10:11], v3, s[16:19], s37 offen")
    e("buffer_load_dwordx2 v[12:13], v3, s[20:23], s3 offen")
    e("buffer_load_dwordx2 v[14:15], v3, s[20:23], s37 offen")
    e("buffer_load_dwordx4 v[16:19], v4, s[24:27], s36 offen")
    e("buffer_load_dwordx4 v[20:23], v4, s[24:27], s38 offen")
    srd(28, 14, 15, NC * EPC * 12)
    srd(32, 14, 15, 256 * 1024, add=WS_DESC)
    e("s_lshr_b32 s39, s39, 6")
    e("v_mov_b32 v5, 1")
    e("v_and_b32 v6, 63, v0")
    e("v_lshlrev_b32 v6, 4, v6")
    e("s_barrier")
    e("s_waitcnt vmcnt(4)")
    for j in range(4):
        e(f"v_mul_u32_u24 v{24+j}, 0xcccd, v{8+j}")
        e(f"v_lshrrev_b32 v{24+j}, 21, v{24+j}")
        e(f"v_mul_u32_u24 v{32+j}, 40, v{24+j}")
        e(f"v_lshlrev_b32 v{24+j}, 2, v{24+j}")
        e(f"ds_add_rtn_u32 v{28+j}, v{24+j}, v5 offset:{K1_CNT}")
        e(f"v_sub_u32 v{32+j}, v{8+j}, v{32+j}")
        e(f"v_mul_u32_u24 v{32+j}, 528, v{32+j}")
    e("s_waitcnt lgkmcnt(0)")
    e("s_barrier")
    e(f"ds_read_b128 v[36:39], v6 offset:{K1_CNT}")
    e("s_waitcnt lgkmcnt(0)")
    e("v_add_u32 v44, v36, v37")
    e("v_add3_u32 v44, v44, v38, v39")
    e("v_mov_b32 v45, v44")
    scan(45)
    e("v_sub_u32 v40, v45, v44")
    e("v_add_u32 v41, v40, v36")
    e("v_add_u32 v42, v41, v37")
    e("v_add_u32 v43, v42, v38")
    e(f"ds_write_b128 v6, v[40:43] offset:{K1_BASE}")
    e("s_waitcnt lgkmcnt(0)")
    for j in range(4):
        e(f"ds_read_b32 v{24+j}, v{24+j} offset:{K1_BASE}")
    e("s_waitcnt vmcnt(0)")
    for j in range(4):
        e(f"v_lshl_or_b32 v{32+j}, v{32+j}, 16, v{12+j}")
    for j in range(4):
        e(f"s_waitcnt lgkmcnt({(3-j)+2*j})")
        e(f"v_add_u32 v{24+j}, v{24+j}, v{28+j}")
        e(f"v_mul_u32_u24 v{24+j}, 12, v{24+j}")
        e(f"v_add_u32 v{24+j}, {K1_STG}, v{24+j}")
        e(f"ds_write2_b32 v{24+j}, v{16+2*j}, v{17+2*j} offset0:0 offset1:1")
        e(f"ds_write_b32 v{24+j}, v{32+j} offset:8")
    c("descriptor (start | count<<16) of bucket 4*lane+j, stored by wave j")
    e("v_lshlrev_b32 v46, 8, v6")
    e("s_lshl_b32 s42, s2, 2")
    for j in range(4):
        e(f"s_cmp_lg_u32 s39, {j}")
        e(f"s_cbranch_scc1 K1_nd{j}")
        e(f"v_lshl_or_b32 v47, v{36+j}, 16, v{40+j}")
        e(f"buffer_store_dword v47, v46, s[32:35], s42 offen offset:{j*1024}")
        e(f"K1_nd{j}:")
    e(f"s_mul_i32 s3, s2, {EPC*12}")
    e("s_waitcnt lgkmcnt(0)")
    e("s_barrier")
    for j in range(3):
        e(f"ds_read_b128 {vr(8+4*j,4)}, v4 offset:{K1_STG + j*K1_T*16}")
    for j in range(3):
        e(f"s_waitcnt lgkmcnt({2-j})")
        e(f"buffer_store_dwordx4 {vr(8+4*j,4)}, v4, s[28:31], s3 offen")
        if j < 2:
            e(f"s_add_u32 s3, s3, {K1_T*16}")
    e("s_endpgm")

    e("K1_pack:")
    e("s_sub_u32 s3, s2, 250")
    e("s_waitcnt lgkmcnt(0)")
    srd(16, 10, 11, 132 * 128 * 2)
    srd(20, 12, 13, 128 * 64 * 2)
    srd(24, 14, 15, PK_SIZE, add=WS_PACK)
    e("v_readfirstlane_b32 s39, v0")
    e("v_and_b32 v1, 63, v0")
    e("s_mov_b32 s44, %#x" % NLOG2E)
    e("s_lshr_b32 s39, s39, 6")
    e("s_cmp_ge_u32 s39, 8")
    e("s_cbranch_scc1 K1_packb5")
    e("s_lshl_b32 s40, s3, 3")
    e("s_add_u32 s40, s40, s39")
    e("s_lshl_b32 s41, s40, 10")
    e("v_lshlrev_b32 v2, 4, v1")
    e("s_cmp_ge_u32 s40, 32")
    e("s_cbranch_scc1 K1_packw2")
    c("w1 blocks: blk = m*16 + ft*4 + kk ; value j = w1[m*64 + 16kk + 8(l/32) + j][ft*32 + l%32]")
    e("s_lshr_b32 s42, s40, 4")
    e("s_lshl_b32 s42, s42, 14")
    e("s_and_b32 s43, s40, 3")
    e("s_lshl_b32 s43, s43, 12")
    e("s_add_u32 s42, s42, s43")
    e("s_bfe_u32 s43, s40, 0x20002")
    e("s_lshl_b32 s43, s43, 6")
    e("s_add_u32 s42, s42, s43")
    e("v_lshrrev_b32 v3, 5, v1")
    e("v_lshlrev_b32 v3, 11, v3")
    e("v_and_b32 v4, 31, v1")
    e("v_lshl_add_u32 v3, v4, 1, v3")
    for j in range(8):
        e(f"buffer_load_ushort v{8+j}, v3, s[16:19], s42 offen offset:{j*256}")
    e("s_waitcnt vmcnt(0)")
    e("s_cmp_ge_u32 s40, 16")
    e("s_cbranch_scc1 K1_packraw")
    for j in range(8):
        e(f"v_lshlrev_b32 v{8+j}, 16, v{8+j}")
        e(f"v_mul_f32 v{8+j}, s44, v{8+j}")
    for j in range(4):
        e(f"v_cvt_pk_bf16_f32 v{16+j}, v{8+2*j}, v{9+2*j}")
    e("buffer_store_dwordx4 v[16:19], v2, s[24:27], s41 offen")
    e("s_endpgm")
    e("K1_packw2:")
    c("w2 blocks: blk-32 = ot*4 + ks ; value j = w2[32ks + 8(l/16) + j][ot*16 + l%16]")
    e("s_and_b32 s43, s40, 3")
    e("s_lshl_b32 s42, s43, 12")
    e("s_bfe_u32 s43, s40, 0x20002")
    e("s_lshl_b32 s43, s43, 5")
    e("s_add_u32 s42, s42, s43")
    e("v_lshrrev_b32 v3, 4, v1")
    e("v_lshlrev_b32 v3, 10, v3")
    e("v_and_b32 v4, 15, v1")
    e("v_lshl_add_u32 v3, v4, 1, v3")
    for j in range(8):
        e(f"buffer_load_ushort v{8+j}, v3, s[20:23], s42 offen offset:{j*128}")
    e("s_waitcnt vmcnt(0)")
    e("K1_packraw:")
    for j in range(4):
        e(f"v_lshl_or_b32 v{16+j}, v{9+2*j}, 16, v{8+2*j}")
    e("buffer_store_dwordx4 v[16:19], v2, s[24:27], s41 offen")
    e("s_endpgm")
    e("K1_packb5:")
    c("edge-feature rows of w1, scaled, split hi (lanes 0-31) / lo (lanes 32-63); ft = 2*(wg-250) + (wave-8)")
    e("s_cmp_ge_u32 s3, 2")
    e("s_cbranch_scc1 K1_done")
    e("s_lshl_b32 s40, s3, 1")
    e("s_add_u32 s40, s40, s39")
    e("s_sub_u32 s40, s40, 8")
    e("s_lshl_b32 s42, s40, 6")
    e(f"s_add_u32 s42, s42, {128*256}")
    e("v_and_b32 v4, 31, v1")
    e("v_lshlrev_b32 v3, 1, v4")
    for j in range(4):
        e(f"buffer_load_ushort v{8+j}, v3, s[16:19], s42 offen offset:{j*256}")
    e("v_cmp_gt_u32 vcc, 32, v1")
    e("s_lshl_b32 s41, s40, 9")
    e(f"s_add_u32 s41, s41, {PK_B5}")
    e("v_lshlrev_b32 v2, 3, v1")
    e("s_waitcnt vmcnt(0)")
    for j in range(4):
        e(f"v_lshlrev_b32 v{8+j}, 16, v{8+j}")
        e(f"v_mul_f32 v{8+j}, s44, v{8+j}")
        e(f"v_and_b32 v{12+j}, 0xffff0000, v{8+j}")
        e(f"v_sub_f32 v{8+j}, v{8+j}, v{12+j}")
        e(f"v_cndmask_b32 v{8+j}, v{8+j}, v{12+j}, vcc")
    e("v_cvt_pk_bf16_f32 v16, v8, v9")
    e("v_cvt_pk_bf16_f32 v17, v10, v11")
    e("buffer_store_dwordx2 v[16:17], v2, s[24:27], s41 offen")
    e("K1_done:")
    e("s_endpgm")

RS = 528
Q_BASE = 0
S_BASE = 41 * RS
STG = 43520
REC = STG + 32768
CAP = 4352
MISC = REC + CAP * 16
K2_LDS = MISC + 64
O_CNT, O_BAS, O_DEG = S_BASE + 512, S_BASE + 516, S_BASE + 520

V_LANE, V_C4, V_EA, V_IA, V_NA, V_T0, V_T1, V_T2, V_T3 = 1, 2, 3, 4, 5, 6, 7, 8, 9
V_AA = 10
V_RAW = 14
V_IO = 16
V_AS = 24
V_JJ, V_CB = 28, 29
V_CHK = 30
V_WB = 32
V_B5 = 96
V_A = 112
V_A5 = 128
V_DESC = 132
V_Z = (140, 156)
V_T = 172
V_N, V_DE, V_DO, V_R, V_RES = 188, 190, 192, 194, 196
V_W2 = 200
V_B2 = 216
V_SET = 140
V_RK = 204
V_KA = 220
NVGPR = 236
S_X, S_REC, S_DSC, S_PK, S_OUT, S_B1, S_B2 = 16, 20, 24, 28, 32, 36, 40
S_WV, S_J0, S_L, S_ZERO, S_SAFE, S_MAXL, S_NT, S_TILE, S_STGW = 44, 45, 46, 47, 48, 49, 50, 51, 52
S_TMP, S_TMP2 = 53, 54
S_MX, S_MY = 56, 58
S_M0 = 60
S_MASK = 64
S_K1 = 96

def mfma32(d, a, b, cfirst):
    e(f"v_mfma_f32_32x32x16_bf16 {vr(d,16)}, {vr(a,4)}, {vr(b,4)}, {'0' if cfirst else vr(d,16)}")
def pkfma(d, a, b, cc):
    e(f"v_pk_fma_f32 {vr(d,2)}, {vr(a,2)}, {vr(b,2)}, {vr(cc,2)}")

def q_reads(ft, aset):
    e(f"ds_read_b32 v{V_B5+4*ft+2}, v{V_AS+2*aset} offset:{Q_BASE+128*ft}")
    e(f"ds_read_b32 v{V_B5+4*ft+3}, v{V_AS+2*aset+1} offset:{Q_BASE+128*ft}")
def e_reads(off):
    e(f"ds_read_b64 {vr(V_A5,2)}, v{V_EA} offset:{off}")
    e(f"s_mov_b64 exec, s[{S_MX}:{S_MX+1}]")
    e(f"ds_read_b32 v{V_A5+2}, v{V_EA} offset:{off+12}")
    e(f"s_mov_b64 exec, s[{S_MY}:{S_MY+1}]")
    e(f"ds_read_b32 v{V_A5+3}, v{V_EA} offset:{off+12}")
    e("s_mov_b64 exec, -1")
def idx_reads(off):
    for i in range(4):
        e(f"ds_read_u16 v{V_IO+2*i}, v{V_IA} offset:{off+32*i}")
def raw_reads(off):
    e(f"ds_read_u16 v{V_RAW}, v{V_NA} offset:{off}")
    e(f"ds_read_u16 v{V_RAW+1}, v{V_NA} offset:{off+128}")
def dma(i):
    e(f"s_mov_b32 m0, s{S_M0+i}")
    e("s_nop 0")
    e(f"buffer_load_dwordx4 {vr(V_IO+2*i,2)}, s[{S_X}:{S_X+3}], 0 idxen offen lds")
def finish(ft_prev, aset):
    e(f"v_pk_mul_f32 {vr(V_RES,2)}, {vr(V_N,2)}, {vr(V_R,2)}")
    if ft_prev & 1:
        pkfma(V_CHK, V_DE, V_DO, V_CHK)
    e(f"ds_add_f32 v{V_AS+2*aset}, v{V_RES} offset:{S_BASE+128*ft_prev}")
    e(f"ds_add_f32 v{V_AS+2*aset+1}, v{V_RES+1} offset:{S_BASE+128*ft_prev}")

def phase(ft, par, safe):
    zc, zn = V_Z[ft & 1], V_Z[(ft + 1) & 1]
    nf = (ft + 1) & 3
    dprev = V_DO if (ft & 1) == 0 else V_DE
    dcur = V_DE if (ft & 1) == 0 else V_DO
    toff = par * 4096
    tr = [f"v_rcp_f32 v{V_R}, v{dprev}", f"v_rcp_f32 v{V_R+1}, v{dprev+1}"]
    tr += [f"v_exp_f32 v{V_T+i}, v{zc+i}" for i in range(16)]
    c(f"---- phase {ft} parity {par}")
    if ft == 2:
        e("s_waitcnt vmcnt(0)")
    if ft == 3:
        e("s_waitcnt lgkmcnt(5)")
    k = 0
    for m in range(5):
        if m < 4:
            mfma32(zn, V_A + 4 * m, V_WB + 16 * nf + 4 * m, m == 0)
        else:
            if ft == 3:
                e("s_waitcnt lgkmcnt(0)")
            mfma32(zn, V_A5, V_B5 + 4 * nf, False)
        if ft == 2 and m < 4:
            e(f"ds_read_b128 {vr(V_A+4*m,4)}, v{V_AA+m}")
        if ft == 3 and m < 4:
            dma(m)
        if m == 4 and ft in (1, 2):
            q_reads(nf, 1 - par)
        n = 3 if m < 4 else 6
        for s in tr[k:k + n]:
            e(s)
        k += n
    finish((ft + 3) & 3, (1 - par) if ft == 0 else par)
    extra = []
    def cap(fn, *a):
        n0 = len(o); fn(*a); r = o[n0:]; del o[n0:]; return r
    if ft == 0:
        extra = ["    s_waitcnt lgkmcnt(2)",
                 f"    v_add_u32 v{V_AS+2*(1-par)}, v{V_RAW}, v{V_C4}",
                 f"    v_add_u32 v{V_AS+2*(1-par)+1}, v{V_RAW+1}, v{V_C4}"] + cap(q_reads, 0, 1 - par) + cap(q_reads, 1, 1 - par)
    elif ft == 1:
        extra = cap(idx_reads, toff + 8192)
    elif ft == 2:
        extra = cap(e_reads, toff + 4096)
    elif ft == 3:
        extra = cap(raw_reads, toff + 8192)
        if par == 1:
            extra += [f"    v_add_u32 v{r}, 0x2000, v{r}" for r in (V_EA, V_IA, V_NA)]
    if not safe:
        e(f"v_pk_add_f32 {vr(dcur,2)}, {vr(V_T,2)}, 1.0 op_sel_hi:[1,0]")
        pkfma(V_N, zc, V_T + 2, zc)
        pkfma(V_N, zc + 2, dcur, V_N)
        pkfma(dcur, dcur, V_T + 2, dcur)
        o.extend(extra)
        for s in range(2, 8):
            pkfma(V_N, V_N, V_T + 2 * s, V_N)
            pkfma(V_N, zc + 2 * s, dcur, V_N)
            pkfma(dcur, dcur, V_T + 2 * s, dcur)
    else:
        for s in range(8):
            e(f"v_pk_add_f32 {vr(V_T+2*s,2)}, {vr(V_T+2*s,2)}, 1.0 op_sel_hi:[1,0]")
        o.extend(extra)
        for i in range(16):
            e(f"v_rcp_f32 v{V_T+i}, v{V_T+i}")
        e(f"v_mov_b32 v{dcur}, 1.0")
        e(f"v_mov_b32 v{dcur+1}, 1.0")
        e(f"v_pk_mul_f32 {vr(V_N,2)}, {vr(zc,2)}, {vr(V_T,2)}")
        for s in range(1, 8):
            pkfma(V_N, zc + 2 * s, V_T + 2 * s, V_N)

def main_loop(tag, safe):
    e(".p2align 6")
    e(f"K2_loop{tag}:")
    for par in range(2):
        for ft in range(4):
            phase(ft, par, safe)
        e(f"s_add_u32 s{S_TILE}, s{S_TILE}, 8")
        e(f"s_cmp_lt_u32 s{S_TILE}, s{S_NT}")
        if par == 0:
            e(f"s_cbranch_scc0 K2_tail0")
        else:
            e(f"s_cbranch_scc1 K2_loop{tag}")
            e(f"s_branch K2_tail1")

def kernel2():
    e("mpnn_main_kernel:")
    e(f"s_cmp_ge_u32 s2, {NB}")
    e("s_cbranch_scc1 K2_done")
    e("s_load_dwordx2 s[4:5], s[0:1], 0")
    e("s_load_dwordx2 s[6:7], s[0:1], 40")
    e("s_load_dwordx4 s[8:11], s[0:1], 56")
    e("s_load_dwordx2 s[12:13], s[0:1], 80")
    e(f"v_readfirstlane_b32 s{S_WV}, v0")
    e(f"v_and_b32 v{V_LANE}, 63, v0")
    e(f"v_and_b32 v{V_C4}, 31, v0")
    e(f"s_lshr_b32 s{S_WV}, s{S_WV}, 6")
    e(f"s_lshl_b32 s{S_STGW}, s{S_WV}, 12")
    e(f"s_add_u32 s{S_STGW}, s{S_STGW}, {STG}")
    for i in range(4):
        e(f"s_add_u32 s{S_M0+i}, s{S_STGW}, {1024*i}")
    c("A-fragment read addresses: row r=l%32, chunk (2kk+h) ^ ((r>>1)&7)")
    e(f"v_bfe_u32 v{V_T0}, v0, 1, 3")
    e(f"v_bfe_u32 v{V_T1}, v0, 5, 1")
    e(f"v_xor_b32 v{V_T0}, v{V_T0}, v{V_T1}")
    e(f"v_lshlrev_b32 v{V_T2}, 7, v{V_C4}")
    e(f"v_add_u32 v{V_T2}, s{S_STGW}, v{V_T2}")
    for kk in range(4):
        e(f"v_xor_b32 v{V_T3}, {2*kk}, v{V_T0}")
        e(f"v_lshl_add_u32 v{V_AA+kk}, v{V_T3}, 4, v{V_T2}")
    c("gather piece i: row 8i + l/8, slot l%8 holds chunk slot ^ ((4i + (l>>4)) & 7)")
    e(f"v_bfe_u32 v{V_T0}, v0, 4, 2")
    e(f"v_and_b32 v{V_T2}, 7, v0")
    e(f"v_xor_b32 v{V_T0}, v{V_T0}, v{V_T2}")
    e(f"v_lshlrev_b32 v{V_IO+1}, 4, v{V_T0}")
    e(f"v_xor_b32 v{V_IO+3}, 64, v{V_IO+1}")
    e(f"v_mov_b32 v{V_IO+5}, v{V_IO+1}")
    e(f"v_mov_b32 v{V_IO+7}, v{V_IO+3}")
    c("one-hot lane masks: group(r) = 2*((r>>2)&1) + (r&1); lane supplies X if group == 2h, Y if group == 2h+1")
    e(f"s_mov_b32 s{S_MX}, 0x05050505")
    e(f"s_mov_b32 s{S_MX+1}, 0x50505050")
    e(f"s_mov_b32 s{S_MY}, 0x0a0a0a0a")
    e(f"s_mov_b32 s{S_MY+1}, 0xa0a0a0a0")
    e(f"v_mov_b32 v{V_A5+2}, 0")
    e(f"v_mov_b32 v{V_A5+3}, 0")
    e(f"v_lshlrev_b32 v{V_C4}, 2, v{V_C4}")
    c("record loading: lane group g=l/16 walks chunks wv*32+g*8+p")
    e(f"v_and_b32 v{V_JJ}, 15, v0")
    e(f"v_lshrrev_b32 v{V_CB}, 4, v0")
    e(f"s_mov_b32 s{S_J0}, 0")
    e(f"s_mov_b32 s{S_L}, 32")
    e(f"s_mov_b32 s{S_ZERO}, 1")
    e(f"s_mov_b32 s{S_SAFE}, 0")
    e(f"s_mov_b32 s{S_K1}, %#x" % NLOG2E)
    e("s_waitcnt lgkmcnt(0)")
    srd(S_X, 4, 5, N, w1or=128 << 16)
    srd(S_REC, 12, 13, NC * EPC * 12)
    e(f"s_lshl_b32 s3, s2, 10")
    e(f"s_add_u32 s3, s3, {WS_DESC}")
    srd(S_DSC, 12, 13, NC * 4, add="s3")
    srd(S_PK, 12, 13, PK_SIZE, add=WS_PACK)
    srd(S_OUT, 10, 11, N * 128)
    srd(S_B1, 6, 7, 256)
    srd(S_B2, 8, 9, 128)

    e("K2_round:")
    e(f"v_lshlrev_b32 v{V_T0}, 5, v{V_CB}")
    e(f"buffer_load_dwordx4 {vr(V_DESC,4)}, v{V_T0}, s[{S_DSC}:{S_DSC+3}], 0 offen")
    e(f"buffer_load_dwordx4 {vr(V_DESC+4,4)}, v{V_T0}, s[{S_DSC}:{S_DSC+3}], 0 offen offset:16")
    c("x rows of this bucket's nodes -> LDS (8 rows per wave)")
    e(f"s_mul_i32 s{S_TMP}, s2, {NPB}")
    e(f"v_lshrrev_b32 v{V_T2}, 3, v0")
    e(f"v_add_u32 v{V_T2}, s{S_TMP}, v{V_T2}")
    e(f"s_and_b32 s{S_TMP}, s{S_WV}, 1")
    e(f"s_lshl_b32 s{S_TMP}, s{S_TMP}, 6")
    e(f"v_xor_b32 v{V_T3}, s{S_TMP}, v{V_IO+1}")
    e(f"s_lshl_b32 s{S_TMP}, s{S_WV}, 10")
    e(f"s_add_u32 s{S_TMP}, s{S_TMP}, {STG}")
    e(f"s_mov_b32 m0, s{S_TMP}")
    e(f"v_lshlrev_b32 v{V_T0}, 4, v{V_LANE}")
    e(f"buffer_load_dwordx4 {vr(V_T2,2)}, s[{S_X}:{S_X+3}], 0 idxen offen lds")
    c("dst-part weights of feature tile wv%4 -> registers, b1")
    e(f"s_and_b32 s{S_TMP2}, s{S_WV}, 3")
    e(f"s_lshl_b32 s{S_TMP}, s{S_TMP2}, 12")
    e(f"s_add_u32 s{S_TMP}, s{S_TMP}, {PK_W1D}")
    for kk in range(4):
        e(f"buffer_load_dwordx4 {vr(V_WB+4*kk,4)}, v{V_T0}, s[{S_PK}:{S_PK+3}], s{S_TMP} offen offset:{1024*kk}")
    e(f"s_lshl_b32 s{S_TMP}, s{S_TMP2}, 6")
    e(f"v_lshrrev_b32 v{V_T1}, 1, v{V_C4}")
    e(f"buffer_load_ushort v{V_WB+32}, v{V_T1}, s[{S_B1}:{S_B1+3}], s{S_TMP} offen")
    c("src-part weights -> LDS (2 KiB per wave)")
    e(f"s_lshl_b32 s{S_TMP}, s{S_WV}, 11")
    e(f"s_add_u32 s{S_TMP2}, s{S_TMP}, {REC}")
    e(f"s_mov_b32 m0, s{S_TMP2}")
    e("s_nop 0")
    e(f"buffer_load_dwordx4 v{V_T0}, s[{S_PK}:{S_PK+3}], s{S_TMP} offen lds")
    e(f"buffer_load_dwordx4 v{V_T0}, s[{S_PK}:{S_PK+3}], s{S_TMP} offen offset:1024 lds")
    e(f"v_lshlrev_b32 v{V_T1}, 3, v{V_LANE}")
    e(f"s_mov_b32 s{S_TMP}, {PK_B5}")
    for ft in range(4):
        e(f"buffer_load_dwordx2 {vr(V_B5+4*ft,2)}, v{V_T1}, s[{S_PK}:{S_PK+3}], s{S_TMP} offen offset:{512*ft}")
    c("zero the sums / counters")
    for i in range(4):
        e(f"v_mov_b32 v{V_A+i}, 0")
    e(f"s_cmp_eq_u32 s{S_ZERO}, 0")
    e("s_cbranch_scc1 K2_nozero")
    e(f"v_lshlrev_b32 v{V_T1}, 4, v0")
    z0 = Q_BASE + 40 * RS
    e(f"ds_write_b128 v{V_T1}, {vr(V_A,4)} offset:{z0}")
    e(f"ds_write_b128 v{V_T1}, {vr(V_A,4)} offset:{z0+8192}")
    e(f"v_cmp_gt_u32 vcc, {(S_BASE+41*RS-z0-16384)//16}, v0")
    e(f"s_and_saveexec_b64 s[{S_MASK}:{S_MASK+1}], vcc")
    e(f"ds_write_b128 v{V_T1}, {vr(V_A,4)} offset:{z0+16384}")
    e("s_mov_b64 exec, -1")
    e(f"v_mov_b32 v{V_CHK}, 0")
    e(f"v_mov_b32 v{V_CHK+1}, 0")
    e("K2_nozero:")
    e(f"v_mul_u32_u24 v{V_T3}, {RS}, v{V_LANE}")
    e(f"v_cmp_gt_u32 vcc, 41, v0")
    e(f"s_and_saveexec_b64 s[{S_MASK}:{S_MASK+1}], vcc")
    e(f"ds_write_b32 v{V_T3}, v{V_A} offset:{O_CNT}")
    e(f"v_mov_b32 v{V_T1}, {MISC}")
    e(f"ds_write_b64 v{V_T1}, {vr(V_A,2)}")
    e("s_mov_b64 exec, -1")
    c("record addresses")
    e(f"v_mul_u32_u24 v{V_T1}, {8*EPC}, v{V_CB}")
    e(f"v_add3_u32 v{V_T1}, v{V_T1}, v{V_JJ}, s{S_J0}")
    e(f"v_add_u32 v{V_T2}, s{S_J0}, v{V_JJ}")
    e(f"s_add_u32 s{S_TMP}, s{S_J0}, s{S_L}")
    e(f"v_mov_b32 v{V_A+4}, 0")
    e(f"v_add_u32 v{V_A+5}, 16, v{V_T2}")
    for p in range(16):
        e(f"v_mov_b32 v{V_SET+4*p+3}, %#x" % ONE2)
    e("s_waitcnt vmcnt(12)")
    for p in range(8):
        d = V_DESC + p
        e(f"v_lshrrev_b32 v{V_A+6}, 16, v{d}")
        e(f"v_and_b32 v{d}, 0xffff, v{d}")
        e(f"v_max_u32 v{V_A+4}, v{V_A+4}, v{V_A+6}")
        e(f"v_min_u32 v{V_A+6}, s{S_TMP}, v{V_A+6}")
        e(f"v_add_u32 v{d}, v{d}, v{V_T1}")
        e(f"v_cmp_lt_u32 s[{S_MASK+2*p}:{S_MASK+2*p+1}], v{V_T2}, v{V_A+6}")
        e(f"v_cmp_lt_u32 s[{S_MASK+16+2*p}:{S_MASK+17+2*p}], v{V_A+5}, v{V_A+6}")
        e(f"v_mul_u32_u24 v{d}, 12, v{d}")
        e(f"s_mov_b32 s{S_TMP2}, {p*EPC*12}")
        e(f"s_mov_b64 exec, s[{S_MASK+2*p}:{S_MASK+2*p+1}]")
        e(f"buffer_load_dwordx3 {vr(V_SET+4*p,3)}, v{d}, s[{S_REC}:{S_REC+3}], s{S_TMP2} offen")
        e("s_mov_b64 exec, -1")
    e("s_waitcnt vmcnt(8)")
    for p in range(8):
        e(f"s_mov_b64 exec, s[{S_MASK+16+2*p}:{S_MASK+17+2*p}]")
        e(f"s_cbranch_execz K2_nb{p}")
        e(f"s_mov_b32 s{S_TMP2}, {p*EPC*12}")
        e(f"buffer_load_dwordx3 {vr(V_SET+32+4*p,3)}, v{V_DESC+p}, s[{S_REC}:{S_REC+3}], s{S_TMP2} offen offset:192")
        e(f"K2_nb{p}:")
    e("s_mov_b64 exec, -1")
    e("s_waitcnt lgkmcnt(0)")
    e("s_barrier")
    e(f"v_mov_b32 v{V_T1}, {MISC}")
    e(f"ds_max_u32 v{V_T1}, v{V_A+4}")
    c("Q = -log2e*(x_dst @ w1d + b1): wave -> row tile wv/4, feature tile wv%4")
    e(f"s_lshr_b32 s{S_TMP}, s{S_WV}, 2")
    e(f"s_sub_u32 s{S_TMP2}, s{S_TMP}, s{S_WV}")
    e(f"s_lshl_b32 s{S_TMP2}, s{S_TMP2}, 12")
    for kk in range(4):
        e(f"v_add_u32 v{V_T1}, s{S_TMP2}, v{V_AA+kk}")
        e(f"ds_read_b128 {vr(V_A+4*kk,4)}, v{V_T1}")
    QD = V_WB + 16
    e(f"v_lshlrev_b32 v{V_WB+32}, 16, v{V_WB+32}")
    e(f"v_mul_f32 v{V_WB+32}, s{S_K1}, v{V_WB+32}")
    e(f"s_mul_i32 s{S_TMP}, s{S_TMP}, {32*RS}")
    e(f"s_and_b32 s{S_TMP2}, s{S_WV}, 3")
    e(f"s_lshl_b32 s{S_TMP2}, s{S_TMP2}, 7")
    e(f"s_add_u32 s{S_TMP}, s{S_TMP}, s{S_TMP2}")
    e(f"v_bfe_u32 v{V_T1}, v0, 5, 1")
    e(f"v_mul_u32_u24 v{V_T1}, {4*RS}, v{V_T1}")
    e(f"v_add3_u32 v{V_T1}, v{V_T1}, v{V_C4}, s{S_TMP}")
    for kk in range(4):
        e(f"s_waitcnt lgkmcnt({3-kk})")
        mfma32(QD, V_A + 4 * kk, V_WB + 4 * kk, kk == 0)
    e("s_nop 11")
    for i in range(16):
        if i == 4:
            e(f"s_cmp_ge_u32 s{S_WV}, 4")
            e("s_cbranch_scc1 K2_qdone")
        e(f"v_fma_f32 v{QD+i}, v{QD+i}, s{S_K1}, v{V_WB+32}")
        e(f"v_and_b32 v{V_T2}, 0xffff0000, v{QD+i}")
        e(f"v_sub_f32 v{QD+i}, v{QD+i}, v{V_T2}")
        e(f"v_cvt_pk_bf16_f32 v{QD+i}, v{QD+i}, v{V_T2}")
        e(f"ds_write_b32 v{V_T1}, v{QD+i} offset:{Q_BASE+(8*(i//4)+i%4)*RS}")
    e("K2_qdone:")
    e(f"v_add_u32 v{V_T1}, {REC}, v{V_T0}")
    e("s_waitcnt lgkmcnt(0)")
    for j in range(16):
        e(f"ds_read_b128 {vr(V_WB+4*j,4)}, v{V_T1} offset:{1024*j}")
    c("histogram by node")
    e(f"v_mov_b32 v{V_T2}, 16")
    e("s_waitcnt vmcnt(0)")
    for p in range(16):
        e(f"s_mov_b64 exec, s[{S_MASK+2*p}:{S_MASK+2*p+1}]")
        if p >= 8:
            e(f"s_cbranch_execz K2_nh{p}")
        e(f"v_lshrrev_b32 v{V_KA+p}, 16, v{V_SET+4*p+2}")
        e(f"ds_add_rtn_u32 v{V_RK+p}, v{V_KA+p}, v{V_T2} offset:{O_CNT}")
        if p >= 8:
            e(f"K2_nh{p}:")
    e("s_mov_b64 exec, -1")
    e("s_waitcnt lgkmcnt(0)")
    e("s_barrier")
    e(f"v_cmp_gt_u32 vcc, {NPB}, v{V_LANE}")
    e(f"v_mov_b32 v{V_T1}, {MISC}")
    e(f"ds_read_b32 v{V_A}, v{V_T3} offset:{O_CNT}")
    e(f"ds_read_b32 v{V_A+1}, v{V_T1}")
    e("s_waitcnt lgkmcnt(0)")
    e(f"v_cndmask_b32 v{V_A}, 0, v{V_A}, vcc")
    e(f"v_readfirstlane_b32 s{S_MAXL}, v{V_A+1}")
    e(f"v_add_u32 v{V_A+2}, 112, v{V_A}")
    e(f"v_and_b32 v{V_A+2}, 0xffffff80, v{V_A+2}")
    e(f"v_mov_b32 v{V_A+3}, v{V_A+2}")
    scan(V_A + 3)
    e(f"v_sub_u32 v{V_A+4}, v{V_A+3}, v{V_A+2}")
    e(f"v_readlane_b32 s{S_NT}, v{V_A+3}, 63")
    e(f"v_add_u32 v{V_A+4}, {REC}, v{V_A+4}")
    e(f"s_cmp_lg_u32 s{S_L}, 32")
    e("s_cbranch_scc1 K2_fits")
    e(f"s_cmp_gt_u32 s{S_MAXL}, 32")
    e("s_cbranch_scc1 K2_nofit")
    e(f"s_cmp_le_u32 s{S_NT}, {CAP*16-512}")
    e("s_cbranch_scc1 K2_fits")
    e("K2_nofit:")
    e(f"s_mov_b32 s{S_L}, 16")
    e("s_barrier")
    e("s_branch K2_round")
    e("K2_fits:")
    e(f"s_mov_b32 s{S_ZERO}, 0")
    e("s_mov_b64 exec, vcc")
    e(f"ds_write_b32 v{V_T3}, v{V_A+4} offset:{O_BAS}")
    e(f"s_cmp_lg_u32 s{S_WV}, 7")
    e("s_cbranch_scc1 K2_nodeg")
    e(f"ds_add_u32 v{V_T3}, v{V_A} offset:{O_DEG}")
    e("K2_nodeg:")
    e("s_mov_b64 exec, -1")
    c("padding records: wave j<7 fills pad slot j of every node, wave 7 the tail of the last tile")
    e(f"v_mov_b32 v{V_A+8}, 0")
    e(f"v_mov_b32 v{V_A+9}, 0")
    e(f"v_mov_b32 v{V_A+10}, %#x" % (0xffff | (40 * RS) << 16))
    e(f"v_mov_b32 v{V_A+11}, 0")
    e(f"s_lshl_b32 s{S_TMP}, s{S_WV}, 4")
    e(f"v_add_u32 v{V_A+5}, s{S_TMP}, v{V_A}")
    e(f"v_cmp_lt_u32 vcc, v{V_A+5}, v{V_A+2}")
    e(f"v_add_u32 v{V_A+5}, v{V_A+5}, v{V_A+4}")
    e(f"s_cmp_lg_u32 s{S_WV}, 7")
    e("s_cbranch_scc1 K2_padw")
    e(f"s_add_u32 s{S_TMP}, s{S_NT}, {REC}")
    e(f"v_add_u32 v{V_A+5}, s{S_TMP}, v{V_T0}")
    e(f"v_cmp_gt_u32 vcc, 32, v{V_LANE}")
    e("K2_padw:")
    e("s_waitcnt lgkmcnt(0)")
    for p in range(16):
        e(f"s_mov_b64 exec, s[{S_MASK+2*p}:{S_MASK+2*p+1}]")
        if p >= 8:
            e(f"s_cbranch_execz K2_nr{p}")
        e(f"ds_read_b32 v{V_KA+p}, v{V_KA+p} offset:{O_BAS}")
        if p >= 8:
            e(f"K2_nr{p}:")
    e("s_mov_b64 exec, vcc")
    e(f"ds_write_b128 v{V_A+5}, {vr(V_A+8,4)}")
    e(f"s_add_u32 s{S_NT}, s{S_NT}, 511")
    e(f"s_lshr_b32 s{S_NT}, s{S_NT}, 9")
    e("s_waitcnt lgkmcnt(0)")
    for p in range(16):
        e(f"s_mov_b64 exec, s[{S_MASK+2*p}:{S_MASK+2*p+1}]")
        if p >= 8:
            e(f"s_cbranch_execz K2_ns{p}")
        e(f"v_add_u32 v{V_KA+p}, v{V_KA+p}, v{V_RK+p}")
        e(f"ds_write_b128 v{V_KA+p}, {vr(V_SET+4*p,4)}")
        if p >= 8:
            e(f"K2_ns{p}:")
    e("s_mov_b64 exec, -1")
    c("per-wave record read addresses, first tile = wv")
    e(f"s_lshl_b32 s{S_TMP}, s{S_WV}, 9")
    e(f"s_add_u32 s{S_TMP}, s{S_TMP}, {REC}")
    e(f"v_bfe_u32 v{V_T1}, v0, 2, 1")
    e(f"v_lshlrev_b32 v{V_EA}, 8, v{V_T1}")
    e(f"v_and_b32 v{V_T1}, 1, v0")
    e(f"v_lshl_add_u32 v{V_EA}, v{V_T1}, 7, v{V_EA}")
    e(f"v_bfe_u32 v{V_T1}, v0, 3, 2")
    e(f"v_lshl_add_u32 v{V_EA}, v{V_T1}, 5, v{V_EA}")
    e(f"v_bfe_u32 v{V_T1}, v0, 1, 1")
    e(f"v_lshl_add_u32 v{V_EA}, v{V_T1}, 4, v{V_EA}")
    e(f"v_add_u32 v{V_EA}, s{S_TMP}, v{V_EA}")
    e(f"v_bfe_u32 v{V_T1}, v0, 5, 1")
    e(f"v_lshlrev_b32 v{V_NA}, 8, v{V_T1}")
    e(f"v_bfe_u32 v{V_T1}, v0, 3, 1")
    e(f"v_lshl_add_u32 v{V_IA}, v{V_T1}, 7, v{V_NA}")
    e(f"v_bfe_u32 v{V_T1}, v0, 4, 1")
    e(f"v_lshl_add_u32 v{V_IA}, v{V_T1}, 4, v{V_IA}")
    e(f"v_add3_u32 v{V_IA}, v{V_IA}, 8, s{S_TMP}")
    e(f"v_add3_u32 v{V_NA}, v{V_NA}, 10, s{S_TMP}")
    e(f"s_mov_b32 s{S_TILE}, s{S_WV}")
    e("s_waitcnt lgkmcnt(0)")
    e("s_barrier")
    c("pipeline fill")
    idx_reads(0)
    raw_reads(0)
    e_reads(0)
    e("s_waitcnt lgkmcnt(5)")
    for i in range(4):
        dma(i)
    c("output-layer weights and b2")
    e(f"s_and_b32 s{S_TMP2}, s{S_WV}, 3")
    e(f"s_lshl_b32 s{S_TMP}, s{S_TMP2}, 12")
    e(f"s_add_u32 s{S_TMP}, s{S_TMP}, {PK_W2}")
    for ks in range(4):
        e(f"buffer_load_dwordx4 {vr(V_W2+4*ks,4)}, v{V_T0}, s[{S_PK}:{S_PK+3}], s{S_TMP} offen offset:{1024*ks}")
    e(f"s_lshl_b32 s{S_TMP}, s{S_TMP2}, 5")
    e(f"v_bfe_u32 v{V_T1}, v0, 4, 2")
    e(f"v_lshlrev_b32 v{V_T1}, 3, v{V_T1}")
    e(f"buffer_load_dwordx2 {vr(V_B2,2)}, v{V_T1}, s[{S_B2}:{S_B2+3}], s{S_TMP} offen")
    e(f"s_cmp_ge_u32 s{S_TILE}, s{S_NT}")
    e("s_cbranch_scc1 K2_idle")
    e("s_waitcnt lgkmcnt(3)")
    e(f"v_add_u32 v{V_AS}, v{V_RAW}, v{V_C4}")
    e(f"v_add_u32 v{V_AS+1}, v{V_RAW+1}, v{V_C4}")
    e(f"v_mov_b32 v{V_AS+2}, v{V_AS}")
    e(f"v_mov_b32 v{V_AS+3}, v{V_AS+1}")
    for ft in range(4):
        q_reads(ft, 0)
    idx_reads(4096)
    raw_reads(4096)
    for r in (V_N, V_N + 1):
        e(f"v_mov_b32 v{r}, 0")
    for r in (V_DE, V_DE + 1, V_DO, V_DO + 1):
        e(f"v_mov_b32 v{r}, 1.0")
    e("s_waitcnt vmcnt(5)")
    for kk in range(4):
        e(f"ds_read_b128 {vr(V_A+4*kk,4)}, v{V_AA+kk}")
    e("s_waitcnt lgkmcnt(0)")
    for m in range(4):
        mfma32(V_Z[0], V_A + 4 * m, V_WB + 4 * m, m == 0)
        dma(m)
    mfma32(V_Z[0], V_A5, V_B5, False)
    e("s_nop 7")
    e(f"s_cmp_lg_u32 s{S_SAFE}, 0")
    e("s_cbranch_scc1 K2_loopS")
    main_loop("F", False)
    main_loop("S", True)
    for par in range(2):
        e(f"K2_tail{par}:")
        e(f"v_rcp_f32 v{V_R}, v{V_DO}")
        e(f"v_rcp_f32 v{V_R+1}, v{V_DO+1}")
        e("s_nop 0")
        finish(3, par)
        if par == 0:
            e("s_branch K2_idle")
    e("K2_idle:")
    e("s_waitcnt vmcnt(0) lgkmcnt(0)")
    e("s_barrier")
    e(f"s_add_u32 s{S_J0}, s{S_J0}, s{S_L}")
    e(f"s_cmp_lt_u32 s{S_J0}, s{S_MAXL}")
    e("s_cbranch_scc1 K2_round")
    c("output layer: out = -ln2 * (S @ w2) + deg * b2; wave -> output tile wv%4, node tiles wv/4 (+2 for waves 0-3)")
    e(f"s_lshr_b32 s{S_TILE}, s{S_WV}, 2")
    e(f"v_and_b32 v{V_T1}, 15, v0")
    e(f"v_bfe_u32 v{V_T2}, v0, 4, 2")
    e(f"v_mul_u32_u24 v{V_EA}, {RS}, v{V_T1}")
    e(f"v_lshl_add_u32 v{V_IA}, v{V_T2}, 5, v{V_EA}")
    e(f"v_lshlrev_b32 v{V_NA}, 7, v{V_T1}")
    e(f"v_lshl_add_u32 v{V_NA}, v{V_T2}, 3, v{V_NA}")
    e(f"v_lshlrev_b32 v{V_A}, 16, v{V_B2}")
    e(f"v_and_b32 v{V_A+1}, 0xffff0000, v{V_B2}")
    e(f"v_lshlrev_b32 v{V_A+2}, 16, v{V_B2+1}")
    e(f"v_and_b32 v{V_A+3}, 0xffff0000, v{V_B2+1}")
    e(f"s_mov_b32 s{S_MAXL}, %#x" % NLN2)
    e(f"v_mov_b32 v{V_A+9}, 0x207")
    e(f"s_mov_b64 s[{S_MASK}:{S_MASK+1}], 0")
    e("K2_out:")
    e(f"s_mul_i32 s{S_TMP}, s{S_TILE}, {16*RS}")
    e(f"v_add_u32 v{V_T2}, s{S_TMP}, v{V_IA}")
    e(f"v_add_u32 v{V_T3}, s{S_TMP}, v{V_EA}")
    Z = V_Z[0]
    e(f"ds_read_b32 v{V_A+8}, v{V_T3} offset:{O_DEG}")
    for ks in range(4):
        e(f"ds_read_b128 {vr(Z+8*ks,4)}, v{V_T2} offset:{S_BASE+128*ks}")
        e(f"ds_read_b128 {vr(Z+8*ks+4,4)}, v{V_T2} offset:{S_BASE+128*ks+16}")
    e(f"s_mul_i32 s{S_TMP}, s2, {NPB*128}")
    e(f"s_lshl_b32 s{S_TMP2}, s{S_TILE}, 11")
    e(f"s_add_u32 s{S_TMP}, s{S_TMP}, s{S_TMP2}")
    e(f"s_and_b32 s{S_TMP2}, s{S_WV}, 3")
    e(f"s_lshl_b32 s{S_TMP2}, s{S_TMP2}, 5")
    e(f"s_add_u32 s{S_TMP}, s{S_TMP}, s{S_TMP2}")
    for ks in range(4):
        e(f"s_waitcnt lgkmcnt({6-2*ks})")
        for j in range(4):
            e(f"v_cvt_pk_bf16_f32 v{V_T+4*ks+j}, v{Z+8*ks+2*j}, v{Z+8*ks+2*j+1}")
        e("s_nop 1")
        e(f"v_mfma_f32_16x16x32_bf16 {vr(V_A+4,4)}, {vr(V_W2+4*ks,4)}, {vr(V_T+4*ks,4)}, {'0' if ks == 0 else vr(V_A+4,4)}")
    e(f"v_lshrrev_b32 v{V_A+8}, 4, v{V_A+8}")
    e(f"v_cvt_f32_u32 v{V_A+8}, v{V_A+8}")
    e(f"s_lshl_b32 s{S_TMP2}, s{S_TILE}, 4")
    e(f"s_sub_u32 s{S_TMP2}, {NPB}, s{S_TMP2}")
    e(f"v_cmp_gt_u32 vcc, s{S_TMP2}, v{V_T1}")
    for i in range(4):
        e(f"v_mul_f32 v{V_A+12+i}, v{V_A+8}, v{V_A+i}")
    e("s_nop 1")
    e("s_mov_b64 exec, vcc")
    for i in range(4):
        e(f"v_fma_f32 v{V_A+4+i}, v{V_A+4+i}, s{S_MAXL}, v{V_A+12+i}")
    for i in range(4):
        e(f"v_cmp_class_f32 vcc, v{V_A+4+i}, v{V_A+9}")
        e(f"s_or_b64 s[{S_MASK}:{S_MASK+1}], s[{S_MASK}:{S_MASK+1}], vcc")
    e(f"v_cvt_pk_bf16_f32 v{V_A+10}, v{V_A+4}, v{V_A+5}")
    e(f"v_cvt_pk_bf16_f32 v{V_A+11}, v{V_A+6}, v{V_A+7}")
    e(f"buffer_store_dwordx2 {vr(V_A+10,2)}, v{V_NA}, s[{S_OUT}:{S_OUT+3}], s{S_TMP} offen")
    e("s_mov_b64 exec, -1")
    e(f"s_add_u32 s{S_TILE}, s{S_TILE}, 2")
    e(f"s_cmp_lt_u32 s{S_TILE}, 3")
    e("s_cbranch_scc1 K2_out")
    c("range check of the fraction denominators; rerun with per-element reciprocals if it failed")
    e(f"s_cmp_lg_u32 s{S_SAFE}, 0")
    e("s_cbranch_scc1 K2_done")
    e(f"v_mov_b32 v{V_T2}, 0x7b800000")
    e(f"v_cmp_nlt_f32 vcc, v{V_CHK}, v{V_T2}")
    e(f"s_or_b64 s[{S_MASK}:{S_MASK+1}], s[{S_MASK}:{S_MASK+1}], vcc")
    e(f"v_cmp_nlt_f32 vcc, v{V_CHK+1}, v{V_T2}")
    e(f"s_or_b64 s[{S_MASK}:{S_MASK+1}], s[{S_MASK}:{S_MASK+1}], vcc")
    e(f"v_mov_b32 v{V_T1}, {MISC}")
    e("s_cbranch_scc0 K2_noflag")
    e(f"v_mov_b32 v{V_T2}, 1")
    e(f"ds_write_b32 v{V_T1}, v{V_T2} offset:4")
    e("K2_noflag:")
    e("s_waitcnt lgkmcnt(0)")
    e("s_barrier")
    e(f"ds_read_b32 v{V_T2}, v{V_T1} offset:4")
    e("s_waitcnt lgkmcnt(0)")
    e(f"v_readfirstlane_b32 s{S_TMP}, v{V_T2}")
    e("s_nop 3")
    e(f"s_cmp_eq_u32 s{S_TMP}, 0")
    e("s_cbranch_scc1 K2_done")
    e(f"s_mov_b32 s{S_SAFE}, 1")
    e(f"s_mov_b32 s{S_J0}, 0")
    e(f"s_mov_b32 s{S_ZERO}, 1")
    e("s_waitcnt vmcnt(0)")
    e("s_barrier")
    e("s_branch K2_round")
    e("K2_done:")
    e("s_endpgm")

def main():
    ref = open(f"cdna_kernels/{NAME}.s.ref").read().splitlines()
    head = [l for l in ref if l.startswith(";") and "@launch" not in l and "Override" not in l and "grid=ceil" not in l][:12]
    o.extend(head)
    o.append(f"; @launch kernel=mpnn_sort_kernel grid=(256,1,1) block=({K1_T},1,1) lds={K1_LDS}")
    o.append(f"; @launch kernel=mpnn_main_kernel grid=({NB},1,1) block=(512,1,1) lds={K2_LDS}")
    o.append('.amdgcn_target "amdgcn-amd-amdhsa--gfx950"')
    o.append(".text")
    for name, fn in (("mpnn_sort_kernel", kernel1), ("mpnn_main_kernel", kernel2)):
        o.append(f".globl {name}")
        o.append(".p2align 8")
        o.append(f".type {name},@function")
        fn()
    o.append('.section .rodata,"a"')
    for name, nv, ns in (("mpnn_sort_kernel", 48, 48), ("mpnn_main_kernel", NVGPR, 100)):
        o.append(".p2align 6")
        o.append(f".amdhsa_kernel {name}")
        o.append(f"  .amdhsa_next_free_vgpr {nv}")
        o.append(f"  .amdhsa_next_free_sgpr {ns}")
        o.append(f"  .amdhsa_accum_offset {(nv+3)//4*4}")
        o.append("  .amdhsa_group_segment_fixed_size 0")
        o.append("  .amdhsa_kernarg_size 88")
        o.append("  .amdhsa_user_sgpr_count 2")
        o.append("  .amdhsa_user_sgpr_kernarg_segment_ptr 1")
        o.append("  .amdhsa_system_sgpr_workgroup_id_x 1")
        o.append(".end_amdhsa_kernel")
    out = sys.argv[1] if len(sys.argv) > 1 else f"cdna_kernels/{NAME}.s"
    open(out, "w").write("\n".join(o) + "\n")

main()
```

```python
import sys

NAME = "gather_scatter__edge_featured_mpnn_mpnn__graph"
N, E = 10000, 640000
NB, NPB = 250, 40
NC, EPC = 250, 2560
WS_DESC = 0x800000
WS_PACK = 0x900000
PK_W1S, PK_W1D, PK_W2, PK_B5 = 0, 16384, 32768, 49152
PK_SIZE = 51200
NLOG2E = 0xBFB8AA3B
NLN2 = 0xBF317218
ONE2 = 0x3F803F80

import os
DBG = int(os.environ.get("DBG", "0"))
DBGWG = int(os.environ.get("DBGWG", "3"))
o = []
_st = [0]
def stamp(i, vreg):
    if DBG:
        i = _st[0]; _st[0] += 1
        c(f"stamp {i}")
        e("s_memtime s[98:99]")
        e("s_waitcnt lgkmcnt(0)")
        e(f"v_writelane_b32 v{vreg}, s98, {i}")
def stamp_out(vreg, nw, tag):
    if DBG:
        e(f"s_cmp_lg_u32 s2, {DBGWG}")
        e(f"s_cbranch_scc1 DBG_skip{tag}")
        e("s_load_dwordx2 s[4:5], s[0:1], 72")
        e("s_waitcnt lgkmcnt(0)")
        srd(8, 4, 5, 256)
        e(f"v_lshrrev_b32 v1, 7, v0")
        e(f"v_lshlrev_b32 v1, 4, v1")
        e(f"v_and_b32 v2, 127, v0")
        e(f"v_add_lshl_u32 v1, v1, v2, 2")
        e(f"v_cmp_gt_u32 vcc, 16, v2")
        e("s_mov_b64 exec, vcc")
        e(f"buffer_store_dword v{vreg}, v1, s[8:11], 0 offen")
        e("s_waitcnt vmcnt(0)")
        e(f"DBG_skip{tag}:")
def e(s=""):
    o.append("    " + s if s and not s.endswith(":") else s)
def c(s):
    o.append("    ; " + s)
def vr(a, n):
    return f"v[{a}:{a+n-1}]"
def srd(d, lo, hi, nrec, w1or=None, add=None):
    if add is None:
        e(f"s_mov_b32 s{d}, s{lo}")
        e(f"s_and_b32 s{d+1}, s{hi}, 0xffff")
    else:
        e(f"s_add_u32 s{d}, s{lo}, {add}")
        e(f"s_addc_u32 s{d+1}, s{hi}, 0")
        e(f"s_and_b32 s{d+1}, s{d+1}, 0xffff")
    if w1or is not None:
        e(f"s_or_b32 s{d+1}, s{d+1}, {w1or:#x}")
    e(f"s_mov_b32 s{d+2}, {nrec}")
    e(f"s_mov_b32 s{d+3}, 0x20000")
def scan(v, op="v_add_u32_dpp"):
    for sh in (1, 2, 4, 8):
        e("s_nop 1")
        e(f"{op} v{v}, v{v}, v{v} row_shr:{sh} row_mask:0xf bank_mask:0xf bound_ctrl:0")
    e("s_nop 1")
    e(f"{op} v{v}, v{v}, v{v} row_bcast:15 row_mask:0xa bank_mask:0xf")
    e("s_nop 1")
    e(f"{op} v{v}, v{v}, v{v} row_bcast:31 row_mask:0xc bank_mask:0xf")

K1_CNT, K1_BASE, K1_STG = 0, 1024, 2048
K1_LDS = K1_STG + EPC * 12
K1_T = 640

def kernel1():
    e("mpnn_sort_kernel:")
    e("s_cmp_ge_u32 s2, 256")
    e("s_cbranch_scc1 K1_done")
    e("s_load_dwordx4 s[4:7], s[0:1], 8")
    e("s_load_dwordx4 s[8:11], s[0:1], 24")
    e("s_load_dwordx2 s[12:13], s[0:1], 48")
    e("s_load_dwordx2 s[14:15], s[0:1], 80")
    e("s_cmp_ge_u32 s2, 250")
    e("s_cbranch_scc1 K1_pack")
    if os.environ.get("EMPTY1"): e("s_endpgm")
    _st[0] = 0
    stamp(0, 48)
    c("zero the bucket counters")
    e("v_lshlrev_b32 v1, 2, v0")
    e("v_mov_b32 v2, 0")
    e("v_cmp_gt_u32 vcc, 256, v0")
    e("s_and_saveexec_b64 s[40:41], vcc")
    e(f"ds_write_b32 v1, v2 offset:{K1_CNT}")
    e("s_mov_b64 exec, s[40:41]")
    e("v_lshlrev_b32 v3, 3, v0")
    e("v_lshlrev_b32 v4, 4, v0")
    e(f"s_mul_i32 s3, s2, {EPC*4}")
    e("s_lshl_b32 s36, s3, 1")
    e(f"s_add_u32 s37, s3, {EPC*2}")
    e(f"s_add_u32 s38, s36, {EPC*4}")
    e("v_readfirstlane_b32 s39, v0")
    e("s_waitcnt lgkmcnt(0)")
    srd(16, 8, 9, E * 4)
    srd(20, 6, 7, E * 4)
    srd(24, 4, 5, E * 8)
    e("buffer_load_dwordx2 v[8:9], v3, s[16:19], s3 offen")
    e("buffer_load_dwordx2 v[10:11], v3, s[16:19], s37 offen")
    e("buffer_load_dwordx2 v[12:13], v3, s[20:23], s3 offen")
    e("buffer_load_dwordx2 v[14:15], v3, s[20:23], s37 offen")
    e("buffer_load_dwordx4 v[16:19], v4, s[24:27], s36 offen")
    e("buffer_load_dwordx4 v[20:23], v4, s[24:27], s38 offen")
    srd(28, 14, 15, NC * EPC * 12)
    srd(32, 14, 15, 256 * 1024, add=WS_DESC)
    e("s_lshr_b32 s39, s39, 6")
    e("v_mov_b32 v5, 1")
    e("s_movk_i32 s43, 625")
    e("v_and_b32 v6, 63, v0")
    e("v_lshlrev_b32 v6, 4, v6")
    stamp(0, 48)
    e("s_barrier")
    e("s_waitcnt vmcnt(4)")
    stamp(0, 48)
    for j in range(4):
        e(f"v_mul_u32_u24 v{24+j}, 214749, v{8+j}")
        e(f"v_lshrrev_b32 v{24+j}, 23, v{24+j}")
        e(f"v_mad_u32_u24 v{32+j}, v{24+j}, s43, 15")
        e(f"v_lshlrev_b32 v{24+j}, 2, v{24+j}")
        e(f"ds_add_rtn_u32 v{28+j}, v{24+j}, v5 offset:{K1_CNT}")
        e(f"v_lshrrev_b32 v{32+j}, 4, v{32+j}")
        e(f"v_sub_u32 v{32+j}, v{8+j}, v{32+j}")
    e("s_waitcnt lgkmcnt(0)")
    stamp(0, 48)
    e("s_barrier")
    stamp(0, 48)
    e(f"ds_read_b128 v[36:39], v6 offset:{K1_CNT}")
    e("s_waitcnt lgkmcnt(0)")
    e("v_add_u32 v44, v36, v37")
    e("v_add3_u32 v44, v44, v38, v39")
    e("v_mov_b32 v45, v44")
    scan(45)
    e("v_sub_u32 v40, v45, v44")
    e("v_add_u32 v41, v40, v36")
    e("v_add_u32 v42, v41, v37")
    e("v_add_u32 v43, v42, v38")
    e(f"ds_write_b128 v6, v[40:43] offset:{K1_BASE}")
    e("s_waitcnt lgkmcnt(0)")
    for j in range(4):
        e(f"ds_read_b32 v{24+j}, v{24+j} offset:{K1_BASE}")
    stamp(0, 48)
    e("s_waitcnt vmcnt(0)")
    stamp(0, 48)
    for j in range(4):
        e(f"v_lshl_or_b32 v{32+j}, v{32+j}, 18, v{12+j}")
    for j in range(4):
        e(f"s_waitcnt lgkmcnt({(3-j)+2*j})")
        e(f"v_add_u32 v{24+j}, v{24+j}, v{28+j}")
        e(f"v_mul_u32_u24 v{24+j}, 12, v{24+j}")
        e(f"v_add_u32 v{24+j}, {K1_STG}, v{24+j}")
        e(f"ds_write2_b32 v{24+j}, v{16+2*j}, v{17+2*j} offset0:0 offset1:1")
        e(f"ds_write_b32 v{24+j}, v{32+j} offset:8")
    c("descriptor (start | count<<16) of bucket 4*lane+j, stored by wave j")
    e("v_lshlrev_b32 v46, 8, v6")
    e("s_lshl_b32 s42, s2, 2")
    for j in range(4):
        e(f"s_cmp_lg_u32 s39, {j}")
        e(f"s_cbranch_scc1 K1_nd{j}")
        e(f"v_lshl_or_b32 v47, v{36+j}, 16, v{40+j}")
        e(f"buffer_store_dword v47, v46, s[32:35], s42 offen offset:{j*1024}")
        e(f"K1_nd{j}:")
    e(f"s_mul_i32 s3, s2, {EPC*12}")
    e("s_waitcnt lgkmcnt(0)")
    stamp(0, 48)
    e("s_barrier")
    stamp(0, 48)
    for j in range(3):
        e(f"ds_read_b128 {vr(8+4*j,4)}, v4 offset:{K1_STG + j*K1_T*16}")
    for j in range(3):
        e(f"s_waitcnt lgkmcnt({2-j})")
        e(f"buffer_store_dwordx4 {vr(8+4*j,4)}, v4, s[28:31], s3 offen")
        if j < 2:
            e(f"s_add_u32 s3, s3, {K1_T*16}")
    stamp(0, 48)
    if DBG: e("s_waitcnt vmcnt(0)")
    stamp(0, 48)
    stamp_out(48, 8, "1")
    e("s_endpgm")

    e("K1_pack:")
    e("s_sub_u32 s3, s2, 250")
    e("s_waitcnt lgkmcnt(0)")
    srd(16, 10, 11, 132 * 128 * 2)
    srd(20, 12, 13, 128 * 64 * 2)
    srd(24, 14, 15, PK_SIZE, add=WS_PACK)
    e("v_readfirstlane_b32 s39, v0")
    e("v_and_b32 v1, 63, v0")
    e("s_mov_b32 s44, %#x" % NLOG2E)
    e("s_lshr_b32 s39, s39, 6")
    e("s_cmp_ge_u32 s39, 8")
    e("s_cbranch_scc1 K1_packb5")
    e("s_lshl_b32 s40, s3, 3")
    e("s_add_u32 s40, s40, s39")
    e("s_lshl_b32 s41, s40, 10")
    e("v_lshlrev_b32 v2, 4, v1")
    e("s_cmp_ge_u32 s40, 32")
    e("s_cbranch_scc1 K1_packw2")
    c("w1 blocks: blk = m*16 + ft*4 + kk ; value j = w1[m*64 + 16kk + 8(l/32) + j][ft*32 + l%32]")
    e("s_lshr_b32 s42, s40, 4")
    e("s_lshl_b32 s42, s42, 14")
    e("s_and_b32 s43, s40, 3")
    e("s_lshl_b32 s43, s43, 12")
    e("s_add_u32 s42, s42, s43")
    e("s_bfe_u32 s43, s40, 0x20002")
    e("s_lshl_b32 s43, s43, 6")
    e("s_add_u32 s42, s42, s43")
    e("v_lshrrev_b32 v3, 5, v1")
    e("v_lshlrev_b32 v3, 11, v3")
    e("v_and_b32 v4, 31, v1")
    e("v_lshl_add_u32 v3, v4, 1, v3")
    for j in range(8):
        e(f"buffer_load_ushort v{8+j}, v3, s[16:19], s42 offen offset:{j*256}")
    e("s_waitcnt vmcnt(0)")
    e("s_cmp_ge_u32 s40, 16")
    e("s_cbranch_scc1 K1_packraw")
    for j in range(8):
        e(f"v_lshlrev_b32 v{8+j}, 16, v{8+j}")
        e(f"v_mul_f32 v{8+j}, s44, v{8+j}")
    for j in range(4):
        e(f"v_cvt_pk_bf16_f32 v{16+j}, v{8+2*j}, v{9+2*j}")
    e("buffer_store_dwordx4 v[16:19], v2, s[24:27], s41 offen")
    e("s_endpgm")
    e("K1_packw2:")
    c("w2 blocks: blk-32 = ot*4 + ks ; value j = w2[32ks + 8(l/16) + j][ot*16 + l%16]")
    e("s_and_b32 s43, s40, 3")
    e("s_lshl_b32 s42, s43, 12")
    e("s_bfe_u32 s43, s40, 0x20002")
    e("s_lshl_b32 s43, s43, 5")
    e("s_add_u32 s42, s42, s43")
    e("v_lshrrev_b32 v3, 4, v1")
    e("v_lshlrev_b32 v3, 10, v3")
    e("v_and_b32 v4, 15, v1")
    e("v_lshl_add_u32 v3, v4, 1, v3")
    for j in range(8):
        e(f"buffer_load_ushort v{8+j}, v3, s[20:23], s42 offen offset:{j*128}")
    e("s_waitcnt vmcnt(0)")
    e("K1_packraw:")
    for j in range(4):
        e(f"v_lshl_or_b32 v{16+j}, v{9+2*j}, 16, v{8+2*j}")
    e("buffer_store_dwordx4 v[16:19], v2, s[24:27], s41 offen")
    e("s_endpgm")
    e("K1_packb5:")
    c("edge-feature rows of w1, scaled, split hi (lanes 0-31) / lo (lanes 32-63); ft = 2*(wg-250) + (wave-8)")
    e("s_cmp_ge_u32 s3, 2")
    e("s_cbranch_scc1 K1_done")
    e("s_lshl_b32 s40, s3, 1")
    e("s_add_u32 s40, s40, s39")
    e("s_sub_u32 s40, s40, 8")
    e("s_lshl_b32 s42, s40, 6")
    e(f"s_add_u32 s42, s42, {128*256}")
    e("v_and_b32 v4, 31, v1")
    e("v_lshlrev_b32 v3, 1, v4")
    for j in range(4):
        e(f"buffer_load_ushort v{8+j}, v3, s[16:19], s42 offen offset:{j*256}")
    e("v_cmp_gt_u32 vcc, 32, v1")
    e("s_lshl_b32 s41, s40, 9")
    e(f"s_add_u32 s41, s41, {PK_B5}")
    e("v_lshlrev_b32 v2, 3, v1")
    e("s_waitcnt vmcnt(0)")
    for j in range(4):
        e(f"v_lshlrev_b32 v{8+j}, 16, v{8+j}")
        e(f"v_mul_f32 v{8+j}, s44, v{8+j}")
        e(f"v_and_b32 v{12+j}, 0xffff0000, v{8+j}")
        e(f"v_sub_f32 v{8+j}, v{8+j}, v{12+j}")
        e(f"v_cndmask_b32 v{8+j}, v{8+j}, v{12+j}, vcc")
    e("v_cvt_pk_bf16_f32 v16, v8, v9")
    e("v_cvt_pk_bf16_f32 v17, v10, v11")
    e("buffer_store_dwordx2 v[16:17], v2, s[24:27], s41 offen")
    e("K1_done:")
    e("s_endpgm")

Q_BASE = 0
S_BASE = 41 * 512
CNT = S_BASE + 72 * 512
BAS = CNT + 256
DEG = BAS + 256
MISC = DEG + 256
STG = MISC + 256
WL = STG + 32768
REC = WL + 18432
CAP = 3328
K2_LDS = REC + CAP * 16
L_SLOW = 8
HB = STG
HBS = 272
assert K2_LDS <= 163840 and STG % 16 == 0

V_LANE, V_C4, V_EA, V_IA, V_NA, V_NB, V_T0, V_T1, V_T2, V_T3 = 1, 2, 3, 4, 5, 6, 7, 10, 8, 9
V_KS = 11
V_AA = 12
V_IO = 16
V_QA = 24
V_SA = 26
V_JJ, V_CB = 28, 29
V_CHK = 30
V_WB = 32
V_B5 = 96
V_A = (112, 148)
V_A5 = 128
V_RAW = 132
V_CN, V_PD, V_BS = 134, 135, 136
V_L4 = 137
V_OUT = 140
V_Z = (164, 180)
V_T = 196
V_N, V_DE, V_DO, V_R, V_RES, V_OLD = 212, 214, 216, 218, 220, 222
V_W2 = 224
V_B2 = 240
V_FA = 242
V_FN = 251
V_SET = 148
V_RK = 212
V_KA = 228
V_DESC = 244
NVGPR = 254
V_DBG = 254
S_X, S_REC, S_DSC, S_PK, S_OUT, S_B1, S_B2 = 16, 20, 24, 28, 32, 36, 40
S_WV, S_J0, S_L, S_FIRST, S_SAFE, S_MAXL, S_NT, S_TILE, S_STGW = 44, 45, 46, 47, 48, 49, 50, 51, 52
S_TMP, S_TMP2, S_N0 = 53, 54, 55
S_MX, S_MY = 56, 58
S_M0 = 60
S_MASK = 64
S_K1, S_NN = 96, 97
S_LA, S_LB = 4, 5

def mfma32(d, a, b, cfirst):
    e(f"v_mfma_f32_32x32x16_bf16 {vr(d,16)}, {vr(a,4)}, {vr(b,4)}, {'0' if cfirst else vr(d,16)}")
def pkfma(d, a, b, cc):
    e(f"v_pk_fma_f32 {vr(d,2)}, {vr(a,2)}, {vr(b,2)}, {vr(cc,2)}")
def cap(fn, *a):
    n0 = len(o); fn(*a); r = o[n0:]; del o[n0:]; return r

def q_reads(ft):
    e(f"ds_read_b32 v{V_B5+4*ft+2}, v{V_QA} offset:{Q_BASE+128*ft}")
    e(f"ds_read_b32 v{V_B5+4*ft+3}, v{V_QA+1} offset:{Q_BASE+128*ft}")
def e_reads(off):
    e(f"ds_read_b64 {vr(V_A5,2)}, v{V_EA} offset:{off}")
    e(f"s_mov_b64 exec, s[{S_MX}:{S_MX+1}]")
    e(f"ds_read_b32 v{V_A5+2}, v{V_EA} offset:{off+12}")
    e(f"s_mov_b64 exec, s[{S_MY}:{S_MY+1}]")
    e(f"ds_read_b32 v{V_A5+3}, v{V_EA} offset:{off+12}")
    e("s_mov_b64 exec, -1")
def idx_reads(off):
    for i in range(4):
        e(f"ds_read_u16 v{V_IO+2*i}, v{V_IA} offset:{off+32*i}")
def raw_reads(off):
    e(f"ds_read_u16 v{V_RAW}, v{V_NA} offset:{off}")
    e(f"ds_read_u16 v{V_RAW+1}, v{V_NB} offset:{off}")
def a_reads(buf):
    for m in range(4):
        e(f"ds_read_b128 {vr(V_A[buf]+4*m,4)}, v{V_AA+m}")
def dma(i, nop=True):
    e(f"s_mov_b32 m0, s{S_M0+i}")
    if nop:
        e("s_nop 0")
    e(f"buffer_load_dwordx4 {vr(V_IO+2*i,2)}, s[{S_X}:{S_X+3}], 0 idxen offen lds")
def s_writes(ft):
    e(f"ds_write_b32 v{V_SA}, v{V_RES} offset:{128*ft}")
    e(f"ds_write_b32 v{V_SA+1}, v{V_RES+1} offset:{512+128*ft}")
def old_reads(ft):
    e(f"ds_read_b32 v{V_OLD}, v{V_SA} offset:{128*ft}")
    e(f"ds_read_b32 v{V_OLD+1}, v{V_SA+1} offset:{512+128*ft}")
def qa_calc():
    e(f"v_lshl_add_u32 v{V_QA}, v{V_RAW}, 7, v{V_C4}")
    e(f"v_lshl_add_u32 v{V_QA+1}, v{V_RAW+1}, 7, v{V_C4}")
def sa_calc():
    e(f"v_add_u32 v{V_SA}, v{V_QA}, v{V_KS}")
    e(f"v_add_u32 v{V_SA+1}, v{V_QA+1}, v{V_KS}")

def phase(ft, par, safe):
    zc, zn = V_Z[ft & 1], V_Z[(ft + 1) & 1]
    nf = (ft + 1) & 3
    fp = (ft + 3) & 3
    dprev = V_DO if (ft & 1) == 0 else V_DE
    dcur = V_DE if (ft & 1) == 0 else V_DO
    toff = par * 128
    abuf = V_A[par] if ft < 3 else V_A[1 - par]
    tr = [f"v_rcp_f32 v{V_R}, v{dprev}", f"v_rcp_f32 v{V_R+1}, v{dprev+1}"]
    tr += [f"v_exp_f32 v{V_T+i}, v{zc+i}" for i in range(16)]
    c(f"---- phase {ft} parity {par}")
    k = 0
    for m in range(5):
        if m < 4:
            mfma32(zn, abuf + 4 * m, V_WB + 16 * nf + 4 * m, m == 0)
        else:
            e("s_waitcnt lgkmcnt(0)")
            mfma32(zn, V_A5, V_B5 + 4 * nf, False)
        n = 3 if m < 4 else 6
        for s in tr[k:k + n]:
            e(s)
        k += n
    pk = cap(pkfma, V_RES, V_N, V_R, V_OLD)
    if fp & 1:
        pk += cap(pkfma, V_CHK, V_DE, V_DO, V_CHK)
    if not safe:
        pk += [f"    v_pk_add_f32 {vr(dcur,2)}, {vr(V_T,2)}, 1.0 op_sel_hi:[1,0]"]
        pk += cap(pkfma, V_N, zc, V_T + 2, zc) + cap(pkfma, V_N, zc + 2, dcur, V_N) + cap(pkfma, dcur, dcur, V_T + 2, dcur)
        for s in range(2, 8):
            pk += cap(pkfma, V_N, V_N, V_T + 2 * s, V_N) + cap(pkfma, V_N, zc + 2 * s, dcur, V_N) + cap(pkfma, dcur, dcur, V_T + 2 * s, dcur)
    else:
        for s in range(8):
            pk += [f"    v_pk_add_f32 {vr(V_T+2*s,2)}, {vr(V_T+2*s,2)}, 1.0 op_sel_hi:[1,0]"]
        pk += [f"    v_rcp_f32 v{V_T+i}, v{V_T+i}" for i in range(16)]
        pk += [f"    v_mov_b32 v{dcur}, 1.0", f"    v_mov_b32 v{dcur+1}, 1.0"]
        pk += [f"    v_pk_mul_f32 {vr(V_N,2)}, {vr(zc,2)}, {vr(V_T,2)}"]
        for s in range(1, 8):
            pk += cap(pkfma, V_N, zc + 2 * s, V_T + 2 * s, V_N)
    side = [[x] for x in cap(s_writes, fp)]
    if ft == 0:
        side += [[], cap(sa_calc), cap(qa_calc)]
        side += [[x] for x in cap(old_reads, 0) + cap(q_reads, 0) + cap(q_reads, 1)]
    elif ft == 1:
        side += [[x] for x in cap(old_reads, 1) + cap(q_reads, 2)]
        ar = cap(a_reads, 1 - par)
        side += [["    s_waitcnt vmcnt(0)", ar[0]]] + [[x] for x in ar[1:]]
    elif ft == 2:
        side += [[x] for x in cap(old_reads, 2) + cap(q_reads, 3)]
        side += [cap(e_reads, toff + 128)]
        for i in range(4):
            d = cap(dma, i, False)
            side += [[d[0]], [d[1]]]
    else:
        side += [[x] for x in cap(old_reads, 3) + cap(idx_reads, toff + 384) + cap(raw_reads, toff + 256)]
        if par == 1:
            side += [[], [f"    v_add_u32 v{r}, 0x100, v{r}" for r in (V_EA, V_IA, V_NA, V_NB)]]
    X = os.environ.get("XP", "")
    def drop(x):
        if "a" in X and "buffer_load" in x: return True
        if "b" in X and (f"v{V_SA}," in x or f"v{V_SA+1}," in x or f"v{V_SA} " in x or f"v{V_SA+1} " in x) and "ds_" in x: return True
        if "c" in X and (f"v{V_QA} " in x or f"v{V_QA+1} " in x) and "ds_" in x: return True
        if "d" in X and not x.strip().startswith("v_"): return True
        if "e" in X and "exec" in x: return True
        return False
    side = [[x for x in l if not drop(x)] for l in side]
    assert len(side) < len(pk)
    for i, p in enumerate(pk):
        o.append(p)
        if i < len(side):
            o.extend(side[i])

def main_loop(tag, safe):
    e(".p2align 6")
    e(f"K2_loop{tag}:")
    for par in range(2):
        for ft in range(4):
            phase(ft, par, safe)
        e(f"s_add_u32 s{S_TILE}, s{S_TILE}, 1")
        e(f"s_cmp_lt_u32 s{S_TILE}, s{S_NT}")
        if par == 0:
            e(f"s_cbranch_scc0 K2_tail")
        else:
            e(f"s_cbranch_scc1 K2_loop{tag}")
            e(f"s_branch K2_tail")

def kernel2():
    A = V_A[0]
    e("mpnn_main_kernel:")
    _st[0] = 0
    e(f"s_cmp_ge_u32 s2, 256")
    e("s_cbranch_scc1 K2_done")
    e("s_load_dwordx2 s[4:5], s[0:1], 0")
    e("s_load_dwordx2 s[6:7], s[0:1], 40")
    e("s_load_dwordx4 s[8:11], s[0:1], 56")
    e("s_load_dwordx2 s[12:13], s[0:1], 80")
    c("bucket = (wg%8)*32 + wg/8: neighbouring buckets share cache lines of the record array")
    e("s_and_b32 s3, s2, 7")
    e("s_lshl_b32 s3, s3, 5")
    e("s_lshr_b32 s14, s2, 3")
    e("s_add_u32 s3, s3, s14")
    e(f"s_mul_i32 s{S_N0}, s3, 625")
    e(f"s_add_u32 s{S_NN}, s{S_N0}, 640")
    e(f"s_add_u32 s{S_N0}, s{S_N0}, 15")
    e(f"s_lshr_b32 s{S_N0}, s{S_N0}, 4")
    e(f"s_lshr_b32 s{S_NN}, s{S_NN}, 4")
    e(f"s_sub_u32 s{S_NN}, s{S_NN}, s{S_N0}")
    e(f"s_lshl_b32 s3, s3, 10")
    e(f"s_add_u32 s3, s3, {WS_DESC}")
    e(f"v_readfirstlane_b32 s{S_WV}, v0")
    e(f"v_and_b32 v{V_LANE}, 63, v0")
    e(f"v_and_b32 v{V_C4}, 31, v0")
    e(f"v_and_b32 v{V_JJ}, 15, v0")
    e(f"v_lshrrev_b32 v{V_CB}, 4, v0")
    e(f"v_lshlrev_b32 v{V_T0}, 4, v{V_LANE}")
    e(f"v_lshlrev_b32 v{V_L4}, 2, v{V_LANE}")
    e(f"s_lshr_b32 s{S_WV}, s{S_WV}, 6")
    c("gather piece i: row 8i + l/8, slot l%8 holds chunk slot ^ ((4i + (l>>4)) & 7)")
    e(f"v_bfe_u32 v{V_T1}, v0, 4, 2")
    e(f"v_and_b32 v{V_T2}, 7, v0")
    e(f"v_xor_b32 v{V_T1}, v{V_T1}, v{V_T2}")
    e(f"v_lshlrev_b32 v{V_IO+1}, 4, v{V_T1}")
    e(f"s_mov_b32 s{S_J0}, 0")
    e(f"s_mov_b32 s{S_L}, 32")
    e(f"s_mov_b32 s{S_FIRST}, 1")
    e(f"s_mov_b32 s{S_SAFE}, 0")
    e("s_waitcnt lgkmcnt(0)")
    srd(S_DSC, 12, 13, NC * 4, add="s3")
    srd(S_X, 4, 5, N, w1or=128 << 16)
    srd(S_PK, 12, 13, PK_SIZE, add=WS_PACK)
    srd(S_B1, 6, 7, 256)
    srd(S_REC, 12, 13, NC * EPC * 12)
    srd(S_OUT, 10, 11, N * 128)
    srd(S_B2, 8, 9, 128)
    stamp(0, V_DBG)

    e("K2_round:")
    e(f"v_lshlrev_b32 v{V_T1}, 5, v{V_CB}")
    e(f"buffer_load_dwordx4 {vr(V_DESC,4)}, v{V_T1}, s[{S_DSC}:{S_DSC+3}], 0 offen")
    e(f"buffer_load_dwordx4 {vr(V_DESC+4,4)}, v{V_T1}, s[{S_DSC}:{S_DSC+3}], 0 offen offset:16")
    c("x rows of this bucket's nodes -> LDS (8 rows per wave), dst-part weights -> LDS, b1")
    e(f"v_lshrrev_b32 v{V_T2}, 3, v0")
    e(f"v_add_u32 v{V_T2}, s{S_N0}, v{V_T2}")
    e(f"s_and_b32 s{S_TMP}, s{S_WV}, 1")
    e(f"s_lshl_b32 s{S_TMP}, s{S_TMP}, 6")
    e(f"v_xor_b32 v{V_T3}, s{S_TMP}, v{V_IO+1}")
    e(f"s_lshl_b32 s{S_TMP}, s{S_WV}, 10")
    e(f"s_add_u32 s{S_TMP}, s{S_TMP}, {STG}")
    e(f"s_mov_b32 m0, s{S_TMP}")
    e(f"s_lshl_b32 s{S_TMP}, s{S_WV}, 11")
    e(f"buffer_load_dwordx4 {vr(V_T2,2)}, s[{S_X}:{S_X+3}], 0 idxen offen lds")
    e(f"s_add_u32 s{S_TMP2}, s{S_TMP}, {STG+8192}")
    e(f"s_mov_b32 m0, s{S_TMP2}")
    e(f"s_add_u32 s{S_TMP}, s{S_TMP}, {PK_W1D}")
    e(f"buffer_load_dwordx4 v{V_T0}, s[{S_PK}:{S_PK+3}], s{S_TMP} offen lds")
    e(f"buffer_load_dwordx4 v{V_T0}, s[{S_PK}:{S_PK+3}], s{S_TMP} offen offset:1024 lds")
    e(f"s_and_b32 s{S_TMP2}, s{S_WV}, 3")
    e(f"s_lshl_b32 s{S_TMP}, s{S_TMP2}, 6")
    e(f"v_and_b32 v{V_T1}, 31, v0")
    e(f"v_lshlrev_b32 v{V_T1}, 1, v{V_T1}")
    e(f"buffer_load_ushort v{V_WB+32}, v{V_T1}, s[{S_B1}:{S_B1+3}], s{S_TMP} offen")
    c("record addresses")
    e(f"v_mul_u32_u24 v{V_T1}, {8*EPC}, v{V_CB}")
    e(f"v_add3_u32 v{V_T1}, v{V_T1}, v{V_JJ}, s{S_J0}")
    e(f"v_add_u32 v{V_T2}, s{S_J0}, v{V_JJ}")
    e(f"s_add_u32 s{S_TMP}, s{S_J0}, s{S_L}")
    e(f"v_add_u32 v{A+5}, 16, v{V_T2}")
    c("zero row 40 of Q, the slot sums, the counters")
    for i in range(4):
        e(f"v_mov_b32 v{A+i}, 0")
    e(f"v_lshlrev_b32 v{V_T3}, 4, v0")
    z0 = Q_BASE + 40 * 512
    for i in range(4):
        e(f"ds_write_b128 v{V_T3}, {vr(A,4)} offset:{z0+8192*i}")
    nz = (BAS - z0 - 32768) // 16
    e(f"v_cmp_gt_u32 vcc, {nz}, v0")
    e("s_mov_b64 exec, vcc")
    e(f"ds_write_b128 v{V_T3}, {vr(A,4)} offset:{z0+32768}")
    e("s_mov_b64 exec, 1")
    e(f"ds_write_b64 v{A}, {vr(A,2)} offset:{MISC}")
    e("s_mov_b64 exec, -1")
    e(f"s_cmp_eq_u32 s{S_FIRST}, 0")
    e("s_cbranch_scc1 K2_notfirst")
    e(f"ds_write_b32 v{V_L4}, v{A} offset:{DEG}")
    e(f"v_mov_b32 v{V_CHK}, 0")
    e(f"v_mov_b32 v{V_CHK+1}, 0")
    for i in range(8):
        e(f"v_mov_b32 v{V_OUT+i}, 0")
    e("K2_notfirst:")
    stamp(0, V_DBG)
    e("s_waitcnt vmcnt(4)")
    stamp(0, V_DBG)
    e(f"v_max3_u32 v{A+4}, v{V_DESC}, v{V_DESC+1}, v{V_DESC+2}")
    e(f"v_max3_u32 v{A+4}, v{A+4}, v{V_DESC+3}, v{V_DESC+4}")
    e(f"v_max3_u32 v{A+4}, v{A+4}, v{V_DESC+5}, v{V_DESC+6}")
    e(f"v_max_u32 v{A+4}, v{A+4}, v{V_DESC+7}")
    for p in range(8):
        d = V_DESC + p
        e(f"v_lshrrev_b32 v{A+6}, 16, v{d}")
        e(f"v_and_b32 v{d}, 0xffff, v{d}")
        e(f"v_min_u32 v{A+6}, s{S_TMP}, v{A+6}")
        e(f"v_add_u32 v{d}, v{d}, v{V_T1}")
        e(f"v_cmp_lt_u32 s[{S_MASK+2*p}:{S_MASK+2*p+1}], v{V_T2}, v{A+6}")
        e(f"v_cmp_lt_u32 s[{S_MASK+16+2*p}:{S_MASK+17+2*p}], v{A+5}, v{A+6}")
        e(f"v_mul_u32_u24 v{d}, 12, v{d}")
        e(f"s_mov_b32 s{S_TMP2}, {p*EPC*12}")
        e(f"s_mov_b64 exec, s[{S_MASK+2*p}:{S_MASK+2*p+1}]")
        e(f"buffer_load_dwordx3 {vr(V_SET+4*p,3)}, v{d}, s[{S_REC}:{S_REC+3}], s{S_TMP2} offen")
        e("s_mov_b64 exec, -1")
    stamp(0, V_DBG)
    e("s_waitcnt vmcnt(8)")
    stamp(0, V_DBG)
    for p in range(8):
        e(f"s_mov_b64 exec, s[{S_MASK+16+2*p}:{S_MASK+17+2*p}]")
        e(f"s_cbranch_execz K2_nb{p}")
        e(f"s_mov_b32 s{S_TMP2}, {p*EPC*12}")
        e(f"buffer_load_dwordx3 {vr(V_SET+32+4*p,3)}, v{V_DESC+p}, s[{S_REC}:{S_REC+3}], s{S_TMP2} offen offset:192")
        e(f"K2_nb{p}:")
    e("s_mov_b64 exec, -1")
    c("src-part weights (+ edge-feature weights) -> LDS")
    e(f"s_lshl_b32 s{S_TMP}, s{S_WV}, 11")
    e(f"s_add_u32 s{S_TMP2}, s{S_TMP}, {WL}")
    e(f"s_mov_b32 m0, s{S_TMP2}")
    e(f"s_cmp_ge_u32 s{S_WV}, 2")
    e(f"buffer_load_dwordx4 v{V_T0}, s[{S_PK}:{S_PK+3}], s{S_TMP} offen lds")
    e(f"buffer_load_dwordx4 v{V_T0}, s[{S_PK}:{S_PK+3}], s{S_TMP} offen offset:1024 lds")
    e("s_cbranch_scc1 K2_nob5")
    e(f"s_lshl_b32 s{S_TMP}, s{S_WV}, 10")
    e(f"s_add_u32 s{S_TMP2}, s{S_TMP}, {WL+16384}")
    e(f"s_mov_b32 m0, s{S_TMP2}")
    e(f"s_add_u32 s{S_TMP}, s{S_TMP}, {PK_B5}")
    e(f"buffer_load_dwordx4 v{V_T0}, s[{S_PK}:{S_PK+3}], s{S_TMP} offen lds")
    e("K2_nob5:")
    e("s_waitcnt lgkmcnt(0)")
    e("s_barrier")
    stamp(0, V_DBG)
    c("longest segment: only recorded when it matters")
    e(f"v_lshrrev_b32 v{A+4}, 16, v{A+4}")
    e(f"v_cmp_lt_u32 vcc, s{S_L}, v{A+4}")
    e("s_cbranch_vccz K2_nomax")
    e(f"ds_max_u32 v{A}, v{A+4} offset:{MISC}")
    e("K2_nomax:")
    c("static addresses")
    e(f"s_lshl_b32 s{S_STGW}, s{S_WV}, 12")
    e(f"s_add_u32 s{S_STGW}, s{S_STGW}, {STG}")
    for i in range(4):
        e(f"s_add_u32 s{S_M0+i}, s{S_STGW}, {1024*i}")
    c("A-fragment read addresses: row r=l%32, chunk (2kk+h) ^ ((r>>1)&7)")
    e(f"v_bfe_u32 v{V_T1}, v0, 1, 3")
    e(f"v_bfe_u32 v{V_T3}, v0, 5, 1")
    e(f"v_xor_b32 v{V_T1}, v{V_T1}, v{V_T3}")
    e(f"v_and_b32 v{V_C4}, 31, v0")
    e(f"v_lshlrev_b32 v{V_T2}, 7, v{V_C4}")
    c("Q = -log2e*(x_dst @ w1d + b1): wave -> row tile wv/4, feature tile wv%4")
    e(f"s_lshr_b32 s{S_TMP}, s{S_WV}, 2")
    e(f"s_lshl_b32 s{S_TMP2}, s{S_TMP}, 12")
    e(f"s_add_u32 s{S_TMP2}, s{S_TMP2}, {STG}")
    e(f"v_add_u32 v{V_T2}, s{S_TMP2}, v{V_T2}")
    e(f"s_sub_u32 s{S_TMP2}, s{S_STGW}, s{S_TMP2}")
    for kk in range(4):
        e(f"v_xor_b32 v{V_AA+kk}, {2*kk}, v{V_T1}")
        e(f"v_lshl_add_u32 v{V_AA+kk}, v{V_AA+kk}, 4, v{V_T2}")
        e(f"ds_read_b128 {vr(A+4*kk,4)}, v{V_AA+kk}")
    e(f"s_and_b32 s{S_K1}, s{S_WV}, 3")
    e(f"s_lshl_b32 s{S_K1}, s{S_K1}, 12")
    e(f"s_add_u32 s{S_K1}, s{S_K1}, {STG+8192}")
    e(f"v_add_u32 v{V_T2}, s{S_K1}, v{V_T0}")
    for kk in range(4):
        e(f"ds_read_b128 {vr(V_WB+4*kk,4)}, v{V_T2} offset:{1024*kk}")
    for kk in range(4):
        e(f"v_add_u32 v{V_AA+kk}, s{S_TMP2}, v{V_AA+kk}")
    e(f"s_mov_b32 s{S_K1}, %#x" % NLOG2E)
    QD = V_WB + 16
    e(f"v_lshlrev_b32 v{V_C4}, 2, v{V_C4}")
    e(f"v_lshlrev_b32 v{V_WB+32}, 16, v{V_WB+32}")
    e(f"v_mul_f32 v{V_WB+32}, s{S_K1}, v{V_WB+32}")
    e(f"s_lshl_b32 s{S_TMP}, s{S_TMP}, 14")
    e(f"s_and_b32 s{S_TMP2}, s{S_WV}, 3")
    e(f"s_lshl_b32 s{S_TMP2}, s{S_TMP2}, 7")
    e(f"s_add_u32 s{S_TMP}, s{S_TMP}, s{S_TMP2}")
    e(f"v_lshl_add_u32 v{V_T1}, v{V_T3}, 11, v{V_C4}")
    e(f"v_add_u32 v{V_T1}, s{S_TMP}, v{V_T1}")
    c("slot offset of this lane's streams: (4wv + 2h)*512")
    e(f"s_lshl_b32 s{S_TMP}, s{S_WV}, 11")
    e(f"s_add_u32 s{S_TMP}, s{S_TMP}, {S_BASE-Q_BASE}")
    e(f"v_lshlrev_b32 v{V_KS}, 10, v{V_T3}")
    e(f"v_add_u32 v{V_KS}, s{S_TMP}, v{V_KS}")
    e(f"v_xor_b32 v{V_IO+3}, 64, v{V_IO+1}")
    e(f"v_mov_b32 v{V_IO+5}, v{V_IO+1}")
    e(f"v_mov_b32 v{V_IO+7}, v{V_IO+3}")
    for kk in range(4):
        e(f"s_waitcnt lgkmcnt({3-kk})")
        mfma32(QD, A + 4 * kk, V_WB + 4 * kk, kk == 0)
    c("one-hot lane masks: group(r) = 2*((r>>2)&1) + (r&1); lane supplies X if group == 2h, Y if group == 2h+1")
    e(f"s_mov_b32 s{S_MX}, 0x05050505")
    e(f"s_mov_b32 s{S_MX+1}, 0x50505050")
    e(f"s_mov_b32 s{S_MY}, 0x0a0a0a0a")
    e(f"s_mov_b32 s{S_MY+1}, 0xa0a0a0a0")
    e(f"v_mov_b32 v{V_A5+2}, 0")
    e(f"v_mov_b32 v{V_A5+3}, 0")
    for p in range(16):
        e(f"v_mov_b32 v{V_SET+4*p+3}, %#x" % ONE2)
    for i in range(16):
        if i == 4:
            e(f"s_cmp_ge_u32 s{S_WV}, 4")
            e("s_cbranch_scc1 K2_qdone")
        e(f"v_fma_f32 v{QD+i}, v{QD+i}, s{S_K1}, v{V_WB+32}")
        e(f"v_and_b32 v{V_T2}, 0xffff0000, v{QD+i}")
        e(f"v_sub_f32 v{QD+i}, v{QD+i}, v{V_T2}")
        e(f"v_cvt_pk_bf16_f32 v{QD+i}, v{QD+i}, v{V_T2}")
        e(f"ds_write_b32 v{V_T1}, v{QD+i} offset:{Q_BASE+(8*(i//4)+i%4)*512}")
    e("K2_qdone:")
    c("histogram by node")
    e(f"v_mov_b32 v{V_T2}, 16")
    stamp(0, V_DBG)
    e("s_waitcnt vmcnt(0)")
    stamp(0, V_DBG)
    for p in range(16):
        e(f"s_mov_b64 exec, s[{S_MASK+2*p}:{S_MASK+2*p+1}]")
        if p >= 8:
            e(f"s_cbranch_execz K2_nh{p}")
        e(f"v_lshrrev_b32 v{V_KA+p}, 16, v{V_SET+4*p+2}")
        e(f"ds_add_rtn_u32 v{V_RK+p}, v{V_KA+p}, v{V_T2} offset:{CNT}")
        if p >= 8:
            e(f"K2_nh{p}:")
    e("s_mov_b64 exec, -1")
    e(f"v_mov_b32 v{V_T1}, 0")
    e("s_waitcnt lgkmcnt(0)")
    e("s_barrier")
    stamp(0, V_DBG)
    e(f"ds_read_b32 v{V_CN}, v{V_L4} offset:{CNT}")
    e(f"ds_read_b32 v{V_T1}, v{V_T1} offset:{MISC}")
    e(f"v_mov_b32 v{A+8}, 0")
    e(f"v_mov_b32 v{A+9}, 0")
    e(f"v_mov_b32 v{A+11}, 0")
    e(f"v_mov_b32 v{A+10}, 0xffff")
    e(f"v_lshl_or_b32 v{A+10}, v{V_L4}, 16, v{A+10}")
    e(f"s_lshl_b32 s{S_TMP}, s{S_WV}, 4")
    e("s_waitcnt lgkmcnt(0)")
    e(f"v_add_u32 v{V_PD}, 112, v{V_CN}")
    e(f"v_and_b32 v{V_PD}, 0xffffff80, v{V_PD}")
    e(f"v_readfirstlane_b32 s{S_MAXL}, v{V_T1}")
    e(f"v_mov_b32 v{V_BS}, v{V_PD}")
    scan(V_BS)
    e(f"v_add_u32 v{A+5}, s{S_TMP}, v{V_CN}")
    e(f"v_readlane_b32 s{S_NT}, v{V_BS}, 63")
    e(f"v_sub_u32 v{V_BS}, v{V_BS}, v{V_PD}")
    e(f"v_add_u32 v{A+4}, {REC}, v{V_BS}")
    e(f"ds_write_b32 v{V_L4}, v{A+4} offset:{BAS}")
    e(f"v_cmp_lt_u32 vcc, v{A+5}, v{V_PD}")
    e(f"v_add_u32 v{A+5}, v{A+5}, v{A+4}")
    e(f"s_cmp_lg_u32 s{S_L}, 32")
    e("s_cbranch_scc1 K2_fits")
    e(f"s_cmp_gt_u32 s{S_MAXL}, 32")
    e("s_cbranch_scc1 K2_nofit")
    e(f"s_cmp_le_u32 s{S_NT}, {CAP*16-2048}")
    e("s_cbranch_scc1 K2_fits")
    e("K2_nofit:")
    e(f"s_mov_b32 s{S_L}, {L_SLOW}")
    e("s_waitcnt lgkmcnt(0)")
    e("s_barrier")
    e("s_branch K2_round")
    e("K2_fits:")
    e(f"s_mov_b32 s{S_FIRST}, 0")
    e("s_waitcnt lgkmcnt(0)")
    stamp(0, V_DBG)
    for p in range(16):
        e(f"s_mov_b64 exec, s[{S_MASK+2*p}:{S_MASK+2*p+1}]")
        if p >= 8:
            e(f"s_cbranch_execz K2_nr{p}")
        e(f"ds_read_b32 v{V_KA+p}, v{V_KA+p} offset:{BAS}")
        if p >= 8:
            e(f"K2_nr{p}:")
    c("padding records: wave j<7 fills pad slot j of every node, wave 7 the dummy groups at the end")
    e("s_mov_b64 exec, vcc")
    e(f"s_cmp_lg_u32 s{S_WV}, 7")
    e("s_cbranch_scc1 K2_padw")
    e("s_mov_b64 exec, -1")
    e(f"ds_add_u32 v{V_L4}, v{V_CN} offset:{DEG}")
    e(f"s_add_u32 s{S_TMP}, s{S_NT}, {REC}")
    e(f"v_add_u32 v{A+5}, s{S_TMP}, v{V_T0}")
    e(f"v_mov_b32 v{A+10}, %#x" % (0xffff | (160 << 16)))
    e(f"ds_write_b128 v{A+5}, {vr(A+8,4)} offset:1024")
    e("K2_padw:")
    e(f"ds_write_b128 v{A+5}, {vr(A+8,4)}")
    c("streams: T = ceil(groups/16) tiles per SIMD, waves 0-3 take (T+1)/2, waves 4-7 T/2")
    e(f"s_add_u32 s{S_NT}, s{S_NT}, 2047")
    e(f"s_lshr_b32 s{S_NT}, s{S_NT}, 11")
    e(f"s_lshr_b32 s{S_LB}, s{S_NT}, 1")
    e(f"s_sub_u32 s{S_LA}, s{S_NT}, s{S_LB}")
    e(f"s_and_b32 s{S_TMP}, s{S_WV}, 3")
    e(f"s_lshl_b32 s{S_TMP2}, s{S_LA}, 11")
    e(f"s_cmp_ge_u32 s{S_WV}, 4")
    e(f"s_cselect_b32 s{S_NT}, s{S_LB}, s{S_LA}")
    e(f"s_cselect_b32 s{S_TMP2}, s{S_TMP2}, 0")
    e(f"s_mul_i32 s{S_TMP}, s{S_TMP}, s{S_NT}")
    e(f"s_lshl_b32 s{S_TMP}, s{S_TMP}, 9")
    e(f"s_add_u32 s{S_TMP}, s{S_TMP}, s{S_TMP2}")
    e(f"s_add_u32 s{S_TMP}, s{S_TMP}, {REC}")
    e(f"s_lshl_b32 s{S_TMP2}, s{S_NT}, 7")
    e("s_waitcnt lgkmcnt(0)")
    for p in range(16):
        e(f"s_mov_b64 exec, s[{S_MASK+2*p}:{S_MASK+2*p+1}]")
        if p >= 8:
            e(f"s_cbranch_execz K2_ns{p}")
        e(f"v_add_u32 v{V_KA+p}, v{V_KA+p}, v{V_RK+p}")
        e(f"ds_write_b128 v{V_KA+p}, {vr(V_SET+4*p,4)}")
        if p >= 8:
            e(f"K2_ns{p}:")
    e("s_mov_b64 exec, -1")
    c("per-lane record read addresses")
    e(f"v_bfe_u32 v{V_T1}, v0, 2, 1")
    e(f"v_and_b32 v{V_T2}, 1, v0")
    e(f"v_lshl_add_u32 v{V_T1}, v{V_T1}, 1, v{V_T2}")
    e(f"v_mul_u32_u24 v{V_EA}, s{S_TMP2}, v{V_T1}")
    e(f"v_bfe_u32 v{V_T1}, v0, 3, 2")
    e(f"v_lshl_add_u32 v{V_EA}, v{V_T1}, 5, v{V_EA}")
    e(f"v_bfe_u32 v{V_T1}, v0, 1, 1")
    e(f"v_lshl_add_u32 v{V_EA}, v{V_T1}, 4, v{V_EA}")
    e(f"v_add_u32 v{V_EA}, s{S_TMP}, v{V_EA}")
    e(f"v_bfe_u32 v{V_T1}, v0, 5, 1")
    e(f"v_lshlrev_b32 v{V_T1}, 1, v{V_T1}")
    e(f"v_mul_u32_u24 v{V_NA}, s{S_TMP2}, v{V_T1}")
    e(f"v_add3_u32 v{V_NA}, v{V_NA}, 10, s{S_TMP}")
    e(f"v_add_u32 v{V_NB}, s{S_TMP2}, v{V_NA}")
    e(f"v_bfe_u32 v{V_T1}, v0, 3, 1")
    e(f"v_mul_u32_u24 v{V_IA}, s{S_TMP2}, v{V_T1}")
    e(f"v_bfe_u32 v{V_T1}, v0, 4, 1")
    e(f"v_lshl_add_u32 v{V_IA}, v{V_T1}, 4, v{V_IA}")
    e(f"v_add3_u32 v{V_IA}, v{V_IA}, -2, v{V_NA}")
    e(f"s_mov_b32 s{S_TILE}, 0")
    e(f"v_add_u32 v{V_T1}, {WL}, v{V_T0}")
    e(f"v_lshlrev_b32 v{V_T2}, 3, v{V_LANE}")
    e(f"v_add_u32 v{V_T2}, {WL+16384}, v{V_T2}")
    e("s_waitcnt lgkmcnt(0)")
    e("s_barrier")
    stamp(0, V_DBG)
    c("pipeline fill")
    idx_reads(0)
    raw_reads(0)
    e("s_waitcnt lgkmcnt(2)")
    for i in range(4):
        dma(i)
    for j in range(16):
        e(f"ds_read_b128 {vr(V_WB+4*j,4)}, v{V_T1} offset:{1024*j}")
    for ft in range(4):
        e(f"ds_read_b64 {vr(V_B5+4*ft,2)}, v{V_T2} offset:{512*ft}")
    c("output-layer weights and b2")
    e(f"s_and_b32 s{S_TMP2}, s{S_WV}, 3")
    e(f"s_lshl_b32 s{S_TMP}, s{S_TMP2}, 12")
    e(f"s_add_u32 s{S_TMP}, s{S_TMP}, {PK_W2}")
    for ks in range(4):
        e(f"buffer_load_dwordx4 {vr(V_W2+4*ks,4)}, v{V_T0}, s[{S_PK}:{S_PK+3}], s{S_TMP} offen offset:{1024*ks}")
    e(f"s_lshl_b32 s{S_TMP}, s{S_TMP2}, 5")
    e(f"v_bfe_u32 v{V_T1}, v0, 4, 2")
    e(f"v_lshlrev_b32 v{V_T1}, 3, v{V_T1}")
    e(f"buffer_load_dwordx2 {vr(V_B2,2)}, v{V_T1}, s[{S_B2}:{S_B2+3}], s{S_TMP} offen")
    e("s_waitcnt lgkmcnt(15)")
    qa_calc()
    sa_calc()
    for ft in range(4):
        q_reads(ft)
    e_reads(0)
    idx_reads(128)
    raw_reads(128)
    c("slots of node n (lane n): streams of its first and last group")
    Z = V_Z[0]
    e(f"v_cvt_f32_u32 v{Z}, s{S_LA}")
    e(f"v_cvt_f32_u32 v{Z+1}, s{S_LB}")
    e(f"v_rcp_f32 v{Z}, v{Z}")
    e(f"v_rcp_f32 v{Z+1}, v{Z+1}")
    e(f"v_lshrrev_b32 v{Z+2}, 7, v{V_BS}")
    e(f"v_add_u32 v{Z+3}, v{V_BS}, v{V_PD}")
    e(f"v_lshrrev_b32 v{Z+3}, 7, v{Z+3}")
    e(f"v_subrev_u32 v{Z+3}, 1, v{Z+3}")
    e(f"s_lshl_b32 s{S_TMP}, s{S_LA}, 4")
    for g in (Z + 2, Z + 3):
        e(f"v_cvt_f32_i32 v{Z+4}, v{g}")
        e(f"v_subrev_u32 v{Z+5}, s{S_TMP}, v{g}")
        e(f"v_cvt_f32_i32 v{Z+5}, v{Z+5}")
        e(f"v_cmp_gt_i32 vcc, s{S_TMP}, v{g}")
        e(f"v_add_f32 v{Z+4}, 0.5, v{Z+4}")
        e(f"v_add_f32 v{Z+5}, 0.5, v{Z+5}")
        e(f"v_mul_f32 v{Z+4}, v{Z+4}, v{Z}")
        e(f"v_mul_f32 v{Z+5}, v{Z+5}, v{Z+1}")
        e(f"v_cvt_u32_f32 v{Z+4}, v{Z+4}")
        e(f"v_cvt_u32_f32 v{Z+5}, v{Z+5}")
        e(f"v_add_u32 v{Z+5}, 16, v{Z+5}")
        e(f"v_cndmask_b32 v{g}, v{Z+5}, v{Z+4}, vcc")
    e(f"v_cmp_ne_u32 vcc, 0, v{V_PD}")
    e(f"v_sub_u32 v{Z+3}, v{Z+3}, v{Z+2}")
    e(f"v_add_u32 v{Z+3}, 1, v{Z+3}")
    e(f"v_add_u32 v{Z+2}, v{Z+2}, v{V_LANE}")
    e(f"v_cndmask_b32 v{Z+3}, 0, v{Z+3}, vcc")
    e(f"v_and_b32 v{Z+2}, 0xff, v{Z+2}")
    e(f"v_lshl_or_b32 v{Z+2}, v{Z+3}, 8, v{Z+2}")
    e(f"v_lshrrev_b32 v{Z+4}, 5, v0")
    e(f"v_lshlrev_b32 v{Z+4}, 2, v{Z+4}")
    for r in range(3):
        e(f"ds_bpermute_b32 v{V_FN+r}, v{Z+4}, v{Z+2} offset:{64*r}")
    for r in (V_N, V_N + 1, V_OLD, V_OLD + 1):
        e(f"v_mov_b32 v{r}, 0")
    for r in (V_DE, V_DE + 1, V_DO, V_DO + 1):
        e(f"v_mov_b32 v{r}, 1.0")
    e(f"v_lshlrev_b32 v{Z+5}, 2, v{V_C4}")
    e(f"v_add_u32 v{Z+6}, {Q_BASE+40*512}, v{Z+5}")
    e(f"v_add_u32 v{Z+5}, {S_BASE}, v{Z+5}")
    e("s_waitcnt lgkmcnt(0)")
    for r in range(3):
        e(f"v_and_b32 v{Z+7}, 0xff, v{V_FN+r}")
        e(f"v_lshrrev_b32 v{V_FN+r}, 8, v{V_FN+r}")
        e(f"v_lshl_add_u32 v{Z+7}, v{Z+7}, 9, v{Z+5}")
        for j in range(3):
            e(f"v_cmp_lt_u32 vcc, {j}, v{V_FN+r}")
            if j:
                e(f"v_add_u32 v{Z+7}, 0x200, v{Z+7}")
            else:
                e("s_nop 0")
            e("s_nop 0")
            e(f"v_cndmask_b32 v{V_FA+3*r+j}, v{Z+6}, v{Z+7}, vcc")
    e(f"s_cmp_eq_u32 s{S_NT}, 0")
    e("s_cbranch_scc1 K2_idle")
    e("s_waitcnt vmcnt(5)")
    stamp(0, V_DBG)
    a_reads(0)
    e("s_waitcnt lgkmcnt(0)")
    for m in range(4):
        mfma32(V_Z[0], A + 4 * m, V_WB + 4 * m, m == 0)
        dma(m)
    mfma32(V_Z[0], V_A5, V_B5, False)
    idx_reads(256)
    e("s_nop 3")
    stamp(0, V_DBG)
    e(f"s_cmp_lg_u32 s{S_SAFE}, 0")
    e("s_cbranch_scc1 K2_loopS")
    main_loop("F", False)
    main_loop("S", True)
    e(f"K2_tail:")
    e(f"v_rcp_f32 v{V_R}, v{V_DO}")
    e(f"v_rcp_f32 v{V_R+1}, v{V_DO+1}")
    e("s_waitcnt lgkmcnt(0)")
    pkfma(V_RES, V_N, V_R, V_OLD)
    pkfma(V_CHK, V_DE, V_DO, V_CHK)
    s_writes(3)
    e("K2_idle:")
    stamp(0, V_DBG)
    e("s_waitcnt vmcnt(0) lgkmcnt(0)")
    e("s_barrier")
    stamp(0, V_DBG)
    c("fold the slots of each node: thread -> node tid/32 + 16r, features 4c..4c+3")
    for r in range(3):
        for j in range(3):
            e(f"ds_read_b128 {vr(Z+12*r+4*j,4)}, v{V_FA+3*r+j}")
    e(f"v_max3_u32 v{V_T1}, v{V_FN}, v{V_FN+1}, v{V_FN+2}")
    e(f"v_cmp_lt_u32 vcc, 3, v{V_T1}")
    e(f"v_lshrrev_b32 v{V_T2}, 5, v0")
    e(f"v_mul_u32_u24 v{V_T2}, {HBS}, v{V_T2}")
    e(f"v_lshl_add_u32 v{V_T2}, v{V_C4}, 1, v{V_T2}")
    e(f"v_add_u32 v{V_T2}, {HB}, v{V_T2}")
    for r in range(3):
        e(f"s_waitcnt lgkmcnt({6-3*r})")
        for j in (1, 2):
            for h in (0, 2):
                e(f"v_pk_add_f32 {vr(Z+12*r+h,2)}, {vr(Z+12*r+h,2)}, {vr(Z+12*r+4*j+h,2)}")
    e("s_cbranch_vccz K2_folded")
    c("rare: nodes spread over more than three streams")
    e(f"s_mov_b32 s{S_TMP}, 3")
    e("K2_more:")
    for r in range(3):
        e(f"v_cmp_lt_u32 vcc, s{S_TMP}, v{V_FN+r}")
        e(f"v_add_u32 v{V_FA+3*r+2}, 0x200, v{V_FA+3*r+2}")
        e("s_mov_b64 exec, vcc")
        e(f"ds_read_b128 {vr(Z+12*r+4,4)}, v{V_FA+3*r+2}")
        e("s_waitcnt lgkmcnt(0)")
        for h in (0, 2):
            e(f"v_pk_add_f32 {vr(Z+12*r+h,2)}, {vr(Z+12*r+h,2)}, {vr(Z+12*r+4+h,2)}")
        e("s_mov_b64 exec, -1")
    e(f"s_add_u32 s{S_TMP}, s{S_TMP}, 1")
    e(f"v_cmp_lt_u32 vcc, s{S_TMP}, v{V_T1}")
    e("s_cbranch_vccnz K2_more")
    e("K2_folded:")
    for r in range(3):
        e(f"v_cvt_pk_bf16_f32 v{Z+12*r}, v{Z+12*r}, v{Z+12*r+1}")
        e(f"v_cvt_pk_bf16_f32 v{Z+12*r+1}, v{Z+12*r+2}, v{Z+12*r+3}")
        e(f"ds_write_b64 v{V_T2}, {vr(Z+12*r,2)} offset:{16*HBS*r}")
    c("output layer: wave -> output tile wv%4, node tiles wv/4 (+2 for waves 0-3)")
    e(f"s_lshr_b32 s{S_TILE}, s{S_WV}, 2")
    e(f"v_and_b32 v{V_T1}, 15, v0")
    e(f"v_bfe_u32 v{V_T3}, v0, 4, 2")
    e(f"v_mul_u32_u24 v{V_EA}, {HBS}, v{V_T1}")
    e(f"v_lshl_add_u32 v{V_EA}, v{V_T3}, 4, v{V_EA}")
    e(f"s_mul_i32 s{S_TMP}, s{S_TILE}, {16*HBS}")
    e(f"s_add_u32 s{S_TMP}, s{S_TMP}, {HB}")
    e(f"v_add_u32 v{V_EA}, s{S_TMP}, v{V_EA}")
    e(f"s_lshl_b32 s{S_TMP}, s{S_TILE}, 6")
    e(f"v_lshl_add_u32 v{V_IA}, v{V_T1}, 2, s{S_TMP}")
    e("s_waitcnt lgkmcnt(0)")
    e("s_barrier")
    for jb in range(2):
        for ks in range(4):
            e(f"ds_read_b128 {vr(Z+16*jb+4*ks,4)}, v{V_EA} offset:{64*ks+32*HBS*jb}")
    e(f"ds_read_b32 v{A+8}, v{V_IA} offset:{DEG}")
    e(f"ds_read_b32 v{A+9}, v{V_IA} offset:{DEG+128}")
    for jb in range(2):
        for ks in range(4):
            e(f"s_waitcnt lgkmcnt({9-4*jb-ks})")
            e(f"v_mfma_f32_16x16x32_bf16 {vr(V_OUT+4*jb,4)}, {vr(V_W2+4*ks,4)}, {vr(Z+16*jb+4*ks,4)}, {vr(V_OUT+4*jb,4)}")
    e(f"s_add_u32 s{S_J0}, s{S_J0}, s{S_L}")
    e(f"s_cmp_lt_u32 s{S_J0}, s{S_MAXL}")
    e("s_cbranch_scc0 K2_last")
    e("s_waitcnt lgkmcnt(0)")
    e("s_barrier")
    e("s_branch K2_round")
    e("K2_last:")
    c("out = -ln2 * acc + deg * b2")
    e(f"v_lshlrev_b32 v{V_NA}, 7, v{V_T1}")
    e(f"v_lshl_add_u32 v{V_NA}, v{V_T3}, 3, v{V_NA}")
    e(f"v_lshlrev_b32 v{A}, 16, v{V_B2}")
    e(f"v_and_b32 v{A+1}, 0xffff0000, v{V_B2}")
    e(f"v_lshlrev_b32 v{A+2}, 16, v{V_B2+1}")
    e(f"v_and_b32 v{A+3}, 0xffff0000, v{V_B2+1}")
    e(f"s_mov_b32 s{S_K1}, %#x" % NLN2)
    e(f"v_mov_b32 v{A+10}, 0x207")
    e(f"v_mov_b32 v{V_T2}, 0x7b800000")
    e(f"v_cmp_nlt_f32 s[{S_MASK}:{S_MASK+1}], v{V_CHK}, v{V_T2}")
    e(f"v_cmp_nlt_f32 vcc, v{V_CHK+1}, v{V_T2}")
    e(f"s_lshl_b32 s{S_TMP}, s{S_N0}, 7")
    e(f"s_lshl_b32 s{S_TMP2}, s{S_TILE}, 11")
    e(f"s_add_u32 s{S_TMP}, s{S_TMP}, s{S_TMP2}")
    e(f"s_and_b32 s{S_TMP2}, s{S_WV}, 3")
    e(f"s_lshl_b32 s{S_TMP2}, s{S_TMP2}, 5")
    e(f"s_add_u32 s{S_TMP}, s{S_TMP}, s{S_TMP2}")
    e(f"s_or_b64 s[{S_MASK}:{S_MASK+1}], s[{S_MASK}:{S_MASK+1}], vcc")
    e(f"s_lshl_b32 s{S_TMP2}, s{S_TILE}, 4")
    e(f"v_add_u32 v{V_T1}, s{S_TMP2}, v{V_T1}")
    e("s_waitcnt lgkmcnt(0)")
    for jb in range(2):
        e(f"v_lshrrev_b32 v{A+8+jb}, 4, v{A+8+jb}")
        e(f"v_cvt_f32_u32 v{A+8+jb}, v{A+8+jb}")
        if jb:
            e(f"v_add_u32 v{V_T1}, 32, v{V_T1}")
            e(f"s_add_u32 s{S_TMP}, s{S_TMP}, 4096")
        e(f"v_cmp_gt_u32 vcc, s{S_NN}, v{V_T1}")
        for i in range(4):
            e(f"v_mul_f32 v{A+12+i}, v{A+8+jb}, v{A+i}")
        e("s_mov_b64 exec, vcc")
        if jb:
            e("s_cbranch_execz K2_stored")
        for i in range(4):
            e(f"v_fma_f32 v{A+12+i}, v{V_OUT+4*jb+i}, s{S_K1}, v{A+12+i}")
        for i in range(4):
            e(f"v_cmp_class_f32 vcc, v{A+12+i}, v{A+10}")
            e(f"s_or_b64 s[{S_MASK}:{S_MASK+1}], s[{S_MASK}:{S_MASK+1}], vcc")
        e(f"v_cvt_pk_bf16_f32 v{A+4+2*jb}, v{A+12}, v{A+13}")
        e(f"v_cvt_pk_bf16_f32 v{A+5+2*jb}, v{A+14}, v{A+15}")
        e(f"buffer_store_dwordx2 {vr(A+4+2*jb,2)}, v{V_NA}, s[{S_OUT}:{S_OUT+3}], s{S_TMP} offen")
        if not jb:
            e("s_mov_b64 exec, -1")
    e("K2_stored:")
    e("s_mov_b64 exec, -1")
    c("range check of the fraction denominators; rerun with per-element reciprocals if it failed")
    e(f"s_cmp_lg_u32 s{S_SAFE}, 0")
    e("s_cbranch_scc1 K2_done")
    e(f"v_mov_b32 v{V_T1}, 0")
    e(f"s_cmp_eq_u64 s[{S_MASK}:{S_MASK+1}], 0")
    e("s_cbranch_scc1 K2_noflag")
    e(f"v_mov_b32 v{V_T2}, 1")
    e(f"ds_write_b32 v{V_T1}, v{V_T2} offset:{MISC+4}")
    e("K2_noflag:")
    e("s_waitcnt lgkmcnt(0)")
    e("s_barrier")
    e(f"ds_read_b32 v{V_T2}, v{V_T1} offset:{MISC+4}")
    e("s_waitcnt lgkmcnt(0)")
    e(f"v_readfirstlane_b32 s{S_TMP}, v{V_T2}")
    e("s_nop 3")
    e(f"s_cmp_eq_u32 s{S_TMP}, 0")
    e("s_cbranch_scc1 K2_done")
    e(f"s_mov_b32 s{S_SAFE}, 1")
    e(f"s_mov_b32 s{S_J0}, 0")
    e(f"s_mov_b32 s{S_FIRST}, 1")
    e("s_waitcnt vmcnt(0)")
    e("s_barrier")
    e("s_branch K2_round")
    e("K2_done:")
    stamp(0, V_DBG)
    stamp_out(V_DBG, 8, "2")
    e("s_endpgm")

def main():
    ref = open(f"cdna_kernels/{NAME}.s.ref").read().splitlines()
    head = [l for l in ref if l.startswith(";") and "@launch" not in l and "Override" not in l and "grid=ceil" not in l][:12]
    o.extend(head)
    o.append(f"; @launch kernel=mpnn_sort_kernel grid=(256,1,1) block=({K1_T},1,1) lds={K1_LDS}")
    o.append(f"; @launch kernel=mpnn_main_kernel grid=(256,1,1) block=(512,1,1) lds={K2_LDS}")
    o.append('.amdgcn_target "amdgcn-amd-amdhsa--gfx950"')
    o.append(".text")
    for name, fn in (("mpnn_sort_kernel", kernel1), ("mpnn_main_kernel", kernel2)):
        o.append(f".globl {name}")
        o.append(".p2align 8")
        o.append(f".type {name},@function")
        fn()
    o.append('.section .rodata,"a"')
    for name, nv, ns in (("mpnn_sort_kernel", 52 if DBG else 48, 100 if DBG else 48), ("mpnn_main_kernel", 256 if DBG else NVGPR, 100)):
        o.append(".p2align 6")
        o.append(f".amdhsa_kernel {name}")
        o.append(f"  .amdhsa_next_free_vgpr {nv}")
        o.append(f"  .amdhsa_next_free_sgpr {ns}")
        o.append(f"  .amdhsa_accum_offset {(nv+3)//4*4}")
        o.append("  .amdhsa_group_segment_fixed_size 0")
        o.append("  .amdhsa_kernarg_size 88")
        o.append("  .amdhsa_user_sgpr_count 2")
        o.append("  .amdhsa_user_sgpr_kernarg_segment_ptr 1")
        o.append("  .amdhsa_system_sgpr_workgroup_id_x 1")
        o.append(".end_amdhsa_kernel")
    out = sys.argv[1] if len(sys.argv) > 1 else f"cdna_kernels/{NAME}.s"
    open(out, "w").write("\n".join(o) + "\n")

main()
```
